```python
import torch

def _softmax(x, axis=-1):
    return torch.softmax(x, dim=axis)
def _gelu(x):
    return torch.nn.functional.gelu(x, approximate="tanh")
def _silu(x):
    return torch.nn.functional.silu(x)
def _sigmoid(x):
    return torch.sigmoid(x)
def _layernorm(x, axis=-1, eps=1e-5):
    m = x.mean(dim=axis, keepdim=True)
    v = x.var(dim=axis, keepdim=True, unbiased=False)
    return (x - m) / torch.sqrt(v + eps)
def _scatter_add(tgt, idx, src, axis=0):
    return tgt.clone().index_add_(axis, idx, src)
def _segment_sum(src, seg, n):
    out = torch.zeros((n,) + src.shape[1:], dtype=src.dtype)
    return out.index_add_(0, seg, src)
def _pad(x, pw):
    flat = tuple(v for pair in reversed(pw) for v in pair)
    return torch.nn.functional.pad(x, flat)

kernel_name = 'gated_mix__ssm_conv_h3__dense_activation_relu__prompt'

def setup_inputs():

    _w = (lambda a: (lambda t: t.to(torch.bfloat16) if t.is_floating_point() else t)(torch.as_tensor(a)))
    def _A_setup():
        B, S, D = 1, 2048, 1024
        ks = 4
        return {
            "q": _w((lambda *s: torch.randn(*s, dtype=torch.bfloat16) * 0.05)(B, S, D)),
            "k": _w((lambda *s: torch.randn(*s, dtype=torch.bfloat16) * 0.8)(B, S, D)),
            "v": _w((lambda *s: torch.randn(*s, dtype=torch.bfloat16) * 0.8)(B, S, D)),
            "shift_k": _w((lambda *s: torch.randn(*s, dtype=torch.bfloat16) * 0.8)(D, ks) * 0.5),
            "ssm_k": _w((lambda *s: torch.randn(*s, dtype=torch.bfloat16) * 0.8)(D, S) * (1.0 / S ** 0.5)),
            "ssm_D": _w((lambda *s: torch.randn(*s, dtype=torch.bfloat16) * 0.8)(D)),
        }
    _A_in = _A_setup()

    def _B_setup():
        B, S, D, Dff = 1, 2048, 1024, 3584
        return {
            "x": _w((lambda *s: torch.randn(*s, dtype=torch.bfloat16) * 0.05)(B, S, D)),
            "w1": _w((lambda *s: torch.randn(*s, dtype=torch.bfloat16) * 0.05)(D, Dff)),
            "w2": _w((lambda *s: torch.randn(*s, dtype=torch.bfloat16) * 0.05)(Dff, D)),
        }
    _B_in = _B_setup()

    return {
        "A_q": _A_in["q"],
        "A_k": _A_in["k"],
        "A_v": _A_in["v"],
        "A_shift_k": _A_in["shift_k"],
        "A_ssm_k": _A_in["ssm_k"],
        "A_ssm_D": _A_in["ssm_D"],
        "B_x": _B_in["x"],
        "B_w1": _B_in["w1"],
        "B_w2": _B_in["w2"],
        "gate_w": _w((lambda *s: torch.randn(*s, dtype=torch.bfloat16) * 0.05)(1024) * 16.0),
    }

def reference(A_q, A_k, A_v, A_shift_k, A_ssm_k, A_ssm_D, B_x, B_w1, B_w2, gate_w):
    def _A_ref(q, k, v, shift_k, ssm_k, ssm_D):
        B, S, D = q.shape
        ks = shift_k.shape[-1]
        k_pad = _pad(k, ((0, 0), (ks - 1, 0), (0, 0)))
        k_shift = torch.zeros_like(k)
        for t in range(ks):
            k_shift = k_shift + k_pad[:, t:t + S, :] * shift_k[:, ks - 1 - t][None, None, :]
        kv = k_shift * v
        L = 2 * S
        kv_pad = _pad(kv, ((0, 0), (0, S), (0, 0)))
        kf_pad = _pad(ssm_k, ((0, 0), (0, S)))
        kv_f = (lambda x, axes=(-2,-1): torch.fft.rfft2(x.float(), dim=axes))(kv_pad[:, None, :, :], axes=(1, 2))
        kf_f = (lambda x, axes=(-2,-1): torch.fft.rfft2(x.float(), dim=axes))(kf_pad[:, None, :], axes=(1, 2))
        kf_f = (lambda x, *d: x.permute(*d))(kf_f, 1, 2, 0)
        y_f = kv_f * kf_f[None, :, :, :]
        y = (lambda x, s, axes=(-2,-1): torch.fft.irfft2(x, s=s, dim=axes).to(torch.bfloat16))(y_f, (1, L), axes=(1, 2))[:, 0, :S, :]
        y = y + kv * ssm_D[None, None, :]
        return q * y

    def _B_ref(x, w1, w2):
        h = torch.einsum("bsd,df->bsf", x, w1)
        zero = torch.zeros_like(h)
        h = torch.maximum(h, zero)
        return torch.einsum("bsf,fd->bsd", h, w2)

    x = A_q
    g = _sigmoid((x * gate_w).sum(-1, keepdims=True))
    a = _A_ref(x, A_k, A_v, A_shift_k, A_ssm_k, A_ssm_D)
    b = _B_ref(x, B_w1, B_w2)
    return g * a + (1 - g) * b
```

```python
import sys

NAME = "gated_mix__ssm_conv_h3__dense_activation_relu__prompt"

WS_H = 0x0000000
WS_UR = 0x1000000
WS_YT = 0x1400000
WS_PX = 0x1800000
WS_G = 0x2000000
WS_FH = 0x2010000
WS_FY = 0x2012000
WS_FX = 0x2018000
WS_ST = 0x2100000
WS_SIZE = 0x10000000

G1_SLOT = 49152
CV_BASE = 98304
CV_O = 4160
CV_UR = 8320
G2_SLOT = 32768
EP_Q = 131072
EP_Y = 131072 + 16384
LDS_BYTES = 163840

sWG, sT, sWAVE, sX, sI, sW4 = 2, 3, 4, 5, 6, 7
SRD = dict(q=8, w1=12, w2=16, ws=20, out=24, dbg=28, k=32, v=36, sk=40, gw=44, shk=48)
KARG = dict(q=64, k=66, v=68, shk=70, sk=72, sd=74, bx=76, w1=78, w2=80, gw=82, out=84, dbg=86, ws=88)
SIZE = dict(q=4194304, w1=7340032, w2=7340032, ws=WS_SIZE, out=4194304, dbg=256, k=4194304, v=4194304,
            sk=4194304, gw=2048, shk=8192)
sMI1, sNI1, sMI2, sNJ, sKH = 52, 53, 54, 55, 56
sA, sB, sC, sD, sE, sF, sG = 57, 58, 59, 60, 61, 62, 63
sH, sJ, sK, sL, sM, sN = 90, 91, 92, 93, 94, 95
sS0, sS1 = 96, 97
sEX = 98
vST = 255
SPIN_MAX = 200000


class Gen:
    def __init__(self, prof=False, **opt):
        self.L = []
        self.prof = prof
        self.opt = dict(rot1=1, rot2=1, hflag_iter=2)
        self.opt.update(opt)
        self.nlab = 0

    def __call__(self, s):
        for line in s.split("\n"):
            line = line.strip()
            if line:
                self.L.append(line if line.endswith(":") else "    " + line)

    def lab(self, base):
        self.nlab += 1
        return f"L_{base}_{self.nlab}"

    def srd(self, *names):
        for n in names:
            r, k = SRD[n], KARG[n]
            self(f"s_mov_b64 s[{r}:{r+1}], s[{k}:{k+1}]")
            self(f"s_mov_b32 s{r+2}, {SIZE[n]:#x}")
            self(f"s_mov_b32 s{r+3}, 0x20000")

    def R(self, n):
        return f"s[{SRD[n]}:{SRD[n]+3}]"

    def stamp(self, idx):
        if not self.prof:
            return
        self(f"s_memrealtime s[{sS0}:{sS1}]\ns_waitcnt lgkmcnt(0)\nv_writelane_b32 v{vST}, s{sS0}, {idx}")

    def stamp_cyc(self, idx):
        if not self.prof:
            return
        self(f"s_memtime s[{sS0}:{sS1}]\ns_waitcnt lgkmcnt(0)\nv_writelane_b32 v{vST}, s{sS0}, {idx}")

    def interleave(self, mf, other, start=0, per=1):
        o = list(other)
        for i, m in enumerate(mf):
            self(m)
            if i >= start:
                for _ in range(per):
                    if o:
                        self(o.pop(0))
        for x in o:
            self(x)

    def poll(self, vdst, vaddr, srd, soff, vexp, nl):
        lp, done = self.lab("poll"), self.lab("polldone")
        mask = (1 << nl) - 1
        self(f"s_mov_b32 s{sN}, 0")
        self(f"{lp}:")
        self(f"buffer_load_dword v{vdst}, v{vaddr}, {srd}, {soff} offen sc1")
        self("s_waitcnt vmcnt(0)")
        self(f"v_cmp_ne_u32 vcc, v{vdst}, v{vexp}")
        self(f"s_add_u32 s{sN}, s{sN}, 1")
        self(f"s_and_b32 s{sM}, vcc_lo, {mask:#x}")
        self(f"s_cbranch_scc0 {done}")
        self("s_sleep 2")
        self(f"s_cmp_lt_u32 s{sN}, {SPIN_MAX}")
        self(f"s_cbranch_scc1 {lp}")
        self(f"{done}:")

    def lane0_begin(self):
        self(f"s_mov_b64 s[{sEX}:{sEX+1}], exec\ns_mov_b64 exec, 1")

    def lane0_end(self):
        self(f"s_mov_b64 exec, s[{sEX}:{sEX+1}]")

    def prologue(self):
        e = self
        e(f"s_cmp_ge_u32 s{sWG}, 256\ns_cbranch_scc1 L_end")
        e("s_load_dwordx16 s[64:79], s[0:1], 0")
        e("s_load_dwordx8 s[80:87], s[0:1], 64")
        e("s_load_dwordx2 s[88:89], s[0:1], 96")
        e("v_lshrrev_b32 v1, 6, v0\nv_and_b32 v0, 63, v0")
        e(f"v_readfirstlane_b32 s{sWAVE}, v1")
        e(f"s_and_b32 s{sX}, s{sWG}, 7\ns_lshr_b32 s{sI}, s{sWG}, 3")
        e(f"s_mul_i32 s{sA}, s{sI}, 37\ns_lshr_b32 s{sA}, s{sA}, 8")
        e(f"s_mul_i32 s{sB}, s{sA}, 7\ns_sub_u32 s{sB}, s{sI}, s{sB}")
        e(f"s_lshr_b32 s{sC}, s{sX}, 1\ns_lshl_b32 s{sC}, s{sC}, 2")
        e(f"s_add_u32 s{sMI1}, s{sC}, s{sA}")
        e(f"s_and_b32 s{sKH}, s{sX}, 1")
        e(f"s_mul_i32 s{sNI1}, s{sKH}, 7\ns_add_u32 s{sNI1}, s{sNI1}, s{sB}")
        e(f"s_lshr_b32 s{sMI2}, s{sI}, 3\ns_add_u32 s{sMI2}, s{sMI2}, s{sC}")
        e(f"s_and_b32 s{sNJ}, s{sI}, 7")
        e(f"s_and_b32 s{sW4}, s{sWAVE}, 3")
        if self.prof:
            e(f"v_mov_b32 v{vST}, 0")
        e("s_waitcnt lgkmcnt(0)")
        self.stamp(0)
        self.stamp_cyc(60)
        self.srd("q", "ws")
        e(f"s_cmp_ge_u32 s{sWAVE}, 4\ns_cbranch_scc1 L_lwave")

    def gate(self):
        e = self
        self.srd("gw")
        e("v_lshlrev_b32 v1, 4, v0")
        e(f"s_lshl_b32 s{sA}, s{sWG}, 3\ns_lshl_b32 s{sB}, s{sW4}, 1\ns_add_u32 s{sA}, s{sA}, s{sB}")
        e(f"s_lshl_b32 s{sB}, s{sA}, 11")
        for j in range(4):
            e(f"buffer_load_dwordx4 v[{8+4*j}:{11+4*j}], v1, {self.R('q')}, s{sB} offen offset:{j*1024}")
        for j in range(2):
            e(f"buffer_load_dwordx4 v[{24+4*j}:{27+4*j}], v1, {self.R('gw')}, 0 offen offset:{j*1024}")
        e(f"s_lshl_b32 s{sC}, s{sWG}, 7\ns_lshl_b32 s{sD}, s{sW4}, 2\ns_add_u32 s{sC}, s{sC}, s{sD}")
        e(f"s_add_u32 s{sC}, s{sC}, {WS_FX:#x}")
        self.fh_addr(sD)
        e(f"s_cmp_ge_u32 s{sI}, 28\ns_cselect_b32 s{sD}, s{sC}, s{sD}")
        e(f"s_lshl_b32 s{sE}, s{sWG}, 2\ns_add_u32 s{sE}, s{sE}, {WS_FY:#x}")
        e(f"v_mov_b32 v2, s{sC}\nv_mov_b32 v3, 0")
        e(f"v_writelane_b32 v2, s{sD}, 1\nv_writelane_b32 v2, s{sE}, 2")
        e(f"s_mov_b64 s[{sEX}:{sEX+1}], exec\ns_mov_b64 exec, 7")
        e(f"buffer_store_dword v3, v2, {self.R('ws')}, 0 offen sc1")
        self.lane0_end()
        e("v_mov_b32 v4, 0\nv_mov_b32 v5, 0")
        e("s_waitcnt vmcnt(1)")
        for j in range(8):
            e(f"v_lshlrev_b32 v{32+2*j}, 16, v{24+j}\nv_and_b32 v{33+2*j}, 0xffff0000, v{24+j}")
        for j in range(8):
            for r in range(2):
                src = 8 + 8 * r + j
                t = 48 + 2 * r
                e(f"v_lshlrev_b32 v{t}, 16, v{src}\nv_and_b32 v{t+1}, 0xffff0000, v{src}")
                e(f"v_mul_f32 v{t}, v{t}, v{32+2*j}\nv_mul_f32 v{t+1}, v{t+1}, v{33+2*j}")
                e(f"v_cvt_pk_bf16_f32 v{52+r}, v{t}, v{t+1}")
            for r in range(2):
                t = 48 + 2 * r
                e(f"v_lshlrev_b32 v{t}, 16, v{52+r}\nv_and_b32 v{t+1}, 0xffff0000, v{52+r}")
                e(f"v_add_f32 v{t}, v{t}, v{t+1}\nv_add_f32 v{4+r}, v{4+r}, v{t}")
        for dpp in ("row_shr:1", "row_shr:2", "row_shr:4", "row_shr:8", "row_bcast:15 row_mask:0xa",
                    "row_bcast:31 row_mask:0xc"):
            e("s_nop 1")
            e(f"v_add_f32_dpp v4, v4, v4 {dpp}\nv_add_f32_dpp v5, v5, v5 {dpp}")
        e("v_cvt_pk_bf16_f32 v6, v4, v5")
        e("v_lshlrev_b32 v4, 16, v6\nv_and_b32 v5, 0xffff0000, v6")
        e("v_mul_f32 v4, 0xbfb8aa3b, v4\nv_mul_f32 v5, 0xbfb8aa3b, v5")
        e("v_exp_f32 v4, v4\nv_exp_f32 v5, v5\ns_nop 0")
        e("v_add_f32 v4, 1.0, v4\nv_add_f32 v5, 1.0, v5")
        e("v_rcp_f32 v4, v4\nv_rcp_f32 v5, v5\ns_nop 0")
        e("v_cvt_pk_bf16_f32 v6, v4, v5")
        e("v_lshlrev_b32 v8, 16, v6\nv_and_b32 v10, 0xffff0000, v6")
        e("v_sub_f32 v4, 1.0, v8\nv_sub_f32 v5, 1.0, v10")
        e("v_cvt_pk_bf16_f32 v6, v4, v5")
        e("v_lshlrev_b32 v9, 16, v6\nv_and_b32 v11, 0xffff0000, v6")
        e(f"s_lshl_b32 s{sA}, s{sA}, 3\ns_add_u32 s{sA}, s{sA}, {WS_G:#x}")
        e("v_mov_b32 v2, 0")
        e(f"s_mov_b64 s[{sEX}:{sEX+1}], exec\ns_mov_b32 exec_lo, 0\ns_mov_b32 exec_hi, 0x80000000")
        e(f"buffer_store_dwordx4 v[8:11], v2, {self.R('ws')}, s{sA} offen sc1")
        self.lane0_end()

    def fh_addr(self, sdst):
        e = self
        e(f"s_lshl_b32 s{sdst}, s{sMI1}, 1\ns_add_u32 s{sdst}, s{sdst}, s{sKH}\ns_lshl_b32 s{sdst}, s{sdst}, 7")
        e(f"s_mul_i32 s{sT}, s{sKH}, 7\ns_sub_u32 s{sT}, s{sNI1}, s{sT}\ns_lshl_b32 s{sT}, s{sT}, 2")
        e(f"s_add_u32 s{sT}, s{sT}, s{sW4}\ns_lshl_b32 s{sT}, s{sT}, 2")
        e(f"s_add_u32 s{sdst}, s{sdst}, s{sT}\ns_add_u32 s{sdst}, s{sdst}, {WS_FH:#x}")

    def prep(self):
        e = self
        self.srd("k", "v", "shk")
        KR, VR, W, WIN, TMP, OUT = 4, 80, 144, 176, 208, 224
        e(f"s_lshl_b32 s{sA}, s{sX}, 2\ns_add_u32 s{sA}, s{sA}, s{sI}\ns_sub_u32 s{sA}, s{sA}, 28")
        e(f"s_lshr_b32 s{sB}, s{sA}, 1")
        e(f"s_and_b32 s{sA}, s{sA}, 1\ns_lshl_b32 s{sA}, s{sA}, 3\ns_add_u32 s{sA}, s{sA}, s{sWAVE}")
        e(f"s_lshl_b32 s{sC}, s{sB}, 18\ns_lshl_b32 s{sD}, s{sA}, 7\ns_add_u32 s{sC}, s{sC}, s{sD}")
        e("v_lshrrev_b32 v1, 3, v0\nv_lshlrev_b32 v1, 15, v1\nv_and_b32 v2, 7, v0")
        e("v_lshl_add_u32 v1, v2, 4, v1")
        e(f"v_add_u32 v1, s{sC}, v1")
        e("v_subrev_u32 v3, 6144, v1")
        e("v_lshlrev_b32 v2, 6, v2")
        e(f"s_lshl_b32 s{sD}, s{sA}, 9")
        for j in range(4):
            e(f"buffer_load_dwordx4 v[{TMP+4*j}:{TMP+4*j+3}], v2, {self.R('shk')}, s{sD} offen offset:{16*j}")
        e(f"buffer_load_dwordx4 v[{KR}:{KR+3}], v3, {self.R('k')}, 0 offen")
        e(f"buffer_load_dwordx4 v[{KR+4}:{KR+7}], v3, {self.R('k')}, 0 offen offset:2048")
        e(f"s_movk_i32 s{sE}, 0x1000")
        e(f"buffer_load_dwordx4 v[{KR+8}:{KR+11}], v3, {self.R('k')}, s{sE} offen")
        for j in range(16):
            if j % 2 == 0:
                e(f"s_movk_i32 s{sE}, {j*2048:#x}")
            o = (j % 2) * 2048
            e(f"buffer_load_dwordx4 v[{KR+12+4*j}:{KR+15+4*j}], v1, {self.R('k')}, s{sE} offen offset:{o}")
            e(f"buffer_load_dwordx4 v[{VR+4*j}:{VR+3+4*j}], v1, {self.R('v')}, s{sE} offen offset:{o}")
        e(f"s_lshl_b32 s{sE}, s{sWAVE}, 14")
        e("v_and_b32 v2, 7, v0\nv_lshrrev_b32 v3, 3, v0")
        e("v_lshlrev_b32 v3, 1, v3\nv_sub_u32 v3, 15, v3\nv_xor_b32 v3, v3, v2")
        e("v_lshlrev_b32 v3, 4, v3\nv_lshl_add_u32 v3, v2, 11, v3")
        e(f"v_add_u32 v2, s{sE}, v3")
        e("v_xor_b32 v3, 16, v2")
        e("s_waitcnt vmcnt(35)")
        for ch in range(8):
            for hf in range(2):
                e(f"v_lshlrev_b32 v{W+8*(2*hf)+ch}, 16, v{TMP+2*ch+hf}")
                e(f"v_and_b32 v{W+8*(2*hf+1)+ch}, 0xffff0000, v{TMP+2*ch+hf}")

        def unpack(dst, src):
            for c in range(4):
                e(f"v_lshlrev_b32 v{dst+2*c}, 16, v{src+c}\nv_and_b32 v{dst+2*c+1}, 0xffff0000, v{src+c}")
        e("s_waitcnt vmcnt(32)")
        for j in range(3):
            unpack(WIN + 8 * j, KR + 4 * j)
        KS = KR
        def outreg(ch):
            return OUT + 4 * ch if ch < 7 else KR + 8
        for j in range(16):
            e(f"s_waitcnt vmcnt({2*(15-j)})")
            cur = WIN + 8 * ((j + 3) % 4)
            unpack(cur, KR + 12 + 4 * j)
            t = TMP + 8 * (j % 2)
            unpack(t, VR + 4 * j)
            for c in range(4):
                w3 = WIN + 8 * (j % 4) + 2 * c
                e(f"v_pk_mul_f32 v[{KS+2*c}:{KS+2*c+1}], v[{w3}:{w3+1}], v[{W+24+2*c}:{W+25+2*c}]")
            for tap in (2, 1, 0):
                for c in range(4):
                    wr = WIN + 8 * ((j + 3 - tap) % 4) + 2 * c
                    e(f"v_pk_fma_f32 v[{KS+2*c}:{KS+2*c+1}], v[{wr}:{wr+1}], v[{W+8*tap+2*c}:{W+8*tap+2*c+1}], v[{KS+2*c}:{KS+2*c+1}]")
            for c in range(4):
                e(f"v_pk_mul_f32 v[{t+2*c}:{t+2*c+1}], v[{t+2*c}:{t+2*c+1}], v[{KS+2*c}:{KS+2*c+1}]")
            if j % 2 == 1:
                p = (j % 8) // 2
                for ch in range(8):
                    e(f"v_cvt_pk_bf16_f32 v{outreg(ch)+3-p}, v{TMP+8+ch}, v{TMP+ch}")
            if j % 8 == 7:
                for ch in range(8):
                    e(f"ds_write_b128 v{2+j//8}, v[{outreg(ch)}:{outreg(ch)+3}] offset:{ch*256}")
                e("s_waitcnt lgkmcnt(0)")
        e("v_and_b32 v4, 15, v0\nv_lshrrev_b32 v5, 4, v0")
        e("v_lshlrev_b32 v6, 4, v4\nv_lshl_add_u32 v1, v5, 12, v6")
        e("v_lshl_add_u32 v6, v5, 8, v6")
        e(f"v_add_u32 v6, s{sE}, v6")
        for ch in range(8):
            e(f"v_xor_b32 v{8+ch}, {ch*16}, v6")
        for jj in range(16):
            e(f"ds_read_b128 v[{VR+4*jj}:{VR+4*jj+3}], v{8+jj//2} offset:{jj*1024}")
        e(f"s_lshl_b32 s{sC}, s{sA}, 18\ns_sub_u32 s{sD}, 15, s{sB}\ns_lshl_b32 s{sD}, s{sD}, 8")
        e(f"s_add_u32 s{sC}, s{sC}, s{sD}\ns_add_u32 s{sC}, s{sC}, {WS_UR:#x}")
        for jj in range(16):
            e(f"s_waitcnt lgkmcnt({15-jj})")
            e(f"buffer_store_dwordx4 v[{VR+4*jj}:{VR+4*jj+3}], v1, {self.R('ws')}, s{sC} offen sc1")
            e(f"s_add_u32 s{sC}, s{sC}, 0x4000")
        e("s_waitcnt vmcnt(0)\ns_barrier")

    def g1_cwave(self):
        e = self
        ACC = 120
        SA, SB = 16, 64
        vXA, vWA = 2, 4
        self.g1 = dict(ACC=ACC)
        e("v_and_b32 v8, 15, v0\nv_lshrrev_b32 v9, 4, v0")
        e("v_lshrrev_b32 v10, 1, v8\nv_xor_b32 v10, v10, v9\nv_lshlrev_b32 v10, 4, v10")
        e("v_lshl_add_u32 v10, v8, 7, v10")
        e(f"v_add_u32 v{vXA}, {G1_SLOT}, v10\nv_xor_b32 v{vXA+1}, 64, v{vXA}")
        e("v_lshrrev_b32 v10, 2, v8\nv_and_b32 v11, 3, v0")
        e("v_lshl_add_u32 v12, v9, 3, v10\nv_lshlrev_b32 v12, 9, v12")
        e("v_lshl_add_u32 v12, v11, 3, v12")
        e("v_and_b32 v13, 1, v9\nv_lshl_or_b32 v13, v13, 2, v10")
        e(f"s_lshr_b32 s{sA}, s{sW4}, 1\ns_lshl_b32 s{sA}, s{sA}, 8\ns_add_u32 s{sA}, s{sA}, {G1_SLOT+16384}")
        e(f"v_add_u32 v12, s{sA}, v12")
        e(f"s_and_b32 s{sB}, s{sW4}, 1\ns_lshl_b32 s{sB}, s{sB}, 2")
        e(f"v_xor_b32 v13, s{sB}, v13")
        for t in range(4):
            e(f"v_xor_b32 v14, {t}, v13\nv_lshl_add_u32 v{vWA+t}, v14, 5, v12")
        for r in range(128):
            e(f"v_mov_b32 v{ACC+r}, 0")

        def reads(S, ks):
            r = []
            for t in range(4):
                for hh in range(2):
                    d = S + 32 + 4 * t + 2 * hh
                    r.append(f"ds_read_b64_tr_b16 v[{d}:{d+1}], v{vWA+t} offset:{ks*16384+hh*2048}")
            xs = [f"ds_read_b128 v[{S+4*st}:{S+4*st+3}], v{vXA+ks} offset:{st*2048}" for st in range(8)]
            return r[:2] + xs[:4] + r[2:4] + xs[4:] + r[4:]

        def mfmas(S):
            return [f"v_mfma_f32_16x16x32_bf16 v[{ACC+4*(t*8+st)}:{ACC+4*(t*8+st)+3}], v[{S+32+4*t}:{S+35+4*t}], "
                    f"v[{S+4*st}:{S+4*st+3}], v[{ACC+4*(t*8+st)}:{ACC+4*(t*8+st)+3}]"
                    for t in range(4) for st in range(8)]
        e(f"s_mov_b32 s{sK}, 0\ns_mov_b32 s{sA}, 1")
        self.stamp(1)
        e("s_barrier")
        self.stamp(2)
        for x in reads(SA, 0):
            e(x)
        e("L_g1c_loop:")
        e(f"s_add_u32 s{sA}, s{sA}, 1\ns_cmp_eq_u32 s{sA}, 3\ns_cselect_b32 s{sA}, 0, s{sA}")
        e(f"s_cselect_b32 s{sB}, {(-2*G1_SLOT) & 0xffffffff:#x}, s{sC}")
        e("s_waitcnt lgkmcnt(0)")
        self.interleave(mfmas(SA), reads(SB, 1))
        e(f"s_cmp_eq_u32 s{sK}, 15\ns_cbranch_scc1 L_g1c_last")
        e(f"s_sub_u32 s{sT}, s{sK}, 3\ns_cmp_lt_u32 s{sT}, 2\ns_cbranch_scc1 L_g1c_extra")
        e("L_g1c_back:")
        e("s_waitcnt lgkmcnt(0)\ns_barrier")
        bump = [f"v_add_u32 v{r}, s{sB}, v{r}" for r in (vWA, vXA, vWA + 1, vWA + 2, vWA + 3, vXA + 1)]
        self.interleave(mfmas(SB), bump + reads(SA, 0))
        e(f"s_add_u32 s{sK}, s{sK}, 1\ns_branch L_g1c_loop")
        e("L_g1c_extra:\ns_waitcnt vmcnt(0)")
        e(f"s_sub_u32 s{sT}, s{sK}, s{sWAVE}\ns_cmp_lg_u32 s{sT}, 4\ns_cbranch_scc1 L_g1c_back")
        self.srd("dbg")
        e("v_mov_b32 v8, 128\nv_mov_b32 v9, 1")
        self.lane0_begin()
        e(f"buffer_atomic_add v9, v8, {self.R('dbg')}, 0 offen sc1")
        self.lane0_end()
        e("s_branch L_g1c_back")
        e("L_g1c_last:")
        e("s_waitcnt lgkmcnt(0)")
        for m in mfmas(SB):
            e(m)
        self.stamp(3)
        e(f"s_mul_i32 s{sA}, s{sMI1}, {112*8192}\ns_lshl_b32 s{sB}, s{sNI1}, 16\ns_add_u32 s{sA}, s{sA}, s{sB}")
        e(f"s_lshl_b32 s{sB}, s{sW4}, 14\ns_add_u32 s{sA}, s{sA}, s{sB}")
        if WS_H:
            e(f"s_add_u32 s{sA}, s{sA}, {WS_H:#x}")
        e("v_lshlrev_b32 v1, 4, v0")
        n = 0
        for kg in range(2):
            for st in range(8):
                d = SA + 4 * n
                for hh in range(2):
                    a = ACC + 4 * ((2 * kg + hh) * 8 + st)
                    e(f"v_cvt_pk_bf16_f32 v{d+2*hh}, v{a}, v{a+1}\nv_cvt_pk_bf16_f32 v{d+2*hh+1}, v{a+2}, v{a+3}")
                for c in range(4):
                    e(f"v_pk_max_i16 v{d+c}, v{d+c}, 0")
                e(f"buffer_store_dwordx4 v[{d}:{d+3}], v1, {self.R('ws')}, s{sA} offen offset:{(n%4)*1024} sc1")
                if n % 4 == 3:
                    e(f"s_add_u32 s{sA}, s{sA}, 0x1000")
                n += 1
        self.stamp(4)

    def g1_lwave(self):
        e = self
        self.srd("w1")
        vX, vW = 8, 12
        e("v_lshrrev_b32 v1, 3, v0\nv_lshrrev_b32 v2, 4, v0\nv_and_b32 v3, 7, v0")
        e("v_xor_b32 v3, v3, v2\nv_lshlrev_b32 v3, 4, v3\nv_lshl_add_u32 v3, v1, 11, v3")
        e("v_xor_b32 v4, 64, v3")
        for j in range(4):
            e(f"v_add_u32 v{vX+j}, {j*16384 - j*1024}, v{3+(j&1)}")
        e("v_lshrrev_b32 v1, 5, v0\nv_and_b32 v2, 31, v0\nv_lshlrev_b32 v3, 1, v1\nv_xor_b32 v2, v2, v3")
        e("v_lshlrev_b32 v2, 4, v2\nv_mul_u32_u24 v1, 7168, v1")
        for j in range(8):
            cj = (2 * (j & 1) + 4 * (j >> 2)) << 5
            e(f"v_xor_b32 v3, {cj}, v2\nv_add_u32 v3, v3, v1\nv_add_u32 v{vW+j}, {2*j*7168 - (j%4)*1024}, v3")
        e(f"s_lshl_b32 s{sA}, s{sMI1}, 18\ns_lshl_b32 s{sT}, s{sW4}, 16\ns_add_u32 s{sA}, s{sA}, s{sT}")
        e(f"s_lshl_b32 s{sB}, s{sNI1}, 9\ns_mul_i32 s{sT}, s{sW4}, {16*7168}\ns_add_u32 s{sB}, s{sB}, s{sT}")
        if self.opt["rot1"]:
            e(f"s_add_u32 s{sC}, s{sMI1}, s{sNI1}\ns_and_b32 s{sC}, s{sC}, 15")
        else:
            e(f"s_mov_b32 s{sC}, 0")
        e(f"s_mov_b32 s{sD}, {G1_SLOT}")
        e(f"s_lshl_b32 s{sG}, s{sW4}, 12\ns_lshl_b32 s{sH}, s{sW4}, 13\ns_add_u32 s{sH}, s{sH}, 16384")

        def issue():
            e(f"s_lshl_b32 s{sE}, s{sC}, 7\ns_add_u32 s{sE}, s{sE}, s{sA}")
            e(f"s_add_u32 m0, s{sD}, s{sG}")
            e(f"s_mul_i32 s{sF}, s{sC}, {64*7168}\ns_add_u32 s{sF}, s{sF}, s{sB}")
            for j in range(4):
                e(f"buffer_load_dwordx4 v{vX+j}, {self.R('q')}, s{sE} offen offset:{j*1024} lds")
            e(f"s_add_u32 m0, s{sD}, s{sH}")
            e(f"s_add_u32 s{sC}, s{sC}, 1")
            for j in range(4):
                e(f"buffer_load_dwordx4 v{vW+j}, {self.R('w1')}, s{sF} offen offset:{j*1024} lds")
            e("s_add_u32 m0, m0, 0x1000")
            e(f"s_and_b32 s{sC}, s{sC}, 15")
            for j in range(4, 8):
                e(f"buffer_load_dwordx4 v{vW+j}, {self.R('w1')}, s{sF} offen offset:{(j%4)*1024} lds")
            e(f"s_add_u32 s{sD}, s{sD}, {G1_SLOT}\ns_cmp_eq_u32 s{sD}, {3*G1_SLOT}\ns_cselect_b32 s{sD}, 0, s{sD}")
        e(f"s_mov_b32 s{sK}, -2")
        e("s_branch L_g1l_issue")
        e("L_g1l_loop:")
        e("s_waitcnt vmcnt(12)\ns_barrier")
        e("L_g1l_issue:")
        issue()
        e(f"s_add_u32 s{sK}, s{sK}, 1\ns_cmp_lt_i32 s{sK}, 0\ns_cbranch_scc1 L_g1l_issue")
        e(f"s_cmp_lt_i32 s{sK}, 14\ns_cbranch_scc1 L_g1l_loop")
        e("s_waitcnt vmcnt(12)\ns_barrier")
        self.cv_stage_h()
        e("s_waitcnt vmcnt(8)\ns_barrier")

    def cv_stage_h(self):
        e = self
        self.srd("sk", "dbg")
        e(f"s_lshl_b32 s{sA}, s{sWG}, 2\ns_add_u32 s{sA}, s{sA}, s{sW4}\ns_lshl_b32 s{sA}, s{sA}, 12")
        e(f"s_add_u32 s{sH}, s{KARG['sk']}, s{sA}\ns_addc_u32 s{sJ}, s{KARG['sk']+1}, 0")
        e(f"s_lshl_b32 s{sB}, s{sW4}, 14\ns_add_u32 s{sB}, s{sB}, {CV_BASE}")
        e(f"s_load_dword s{sL}, s[{sH}:{sJ}], 0")
        e("v_lshlrev_b32 v1, 4, v0\nv_add_u32 v2, 2, v1")
        e(f"s_add_u32 m0, s{sB}, 32\ns_nop 0")
        for j in range(4):
            e(f"buffer_load_dwordx4 v1, {self.R('sk')}, s{sA} offen offset:{j*1024} lds")
        e(f"s_add_u32 m0, s{sB}, {CV_O+32}\ns_nop 0")
        for j in range(4):
            e(f"buffer_load_dwordx4 v2, {self.R('sk')}, s{sA} offen offset:{j*1024} lds")
        e(f"v_add_u32 v3, {CV_UR+4096}, v1")
        for ln, a in ((30, 0), (31, 16), (32, CV_O), (33, CV_O + 16)):
            e(f"s_movk_i32 s{sT}, {a}\nv_writelane_b32 v3, s{sT}, {ln}")
        e(f"v_add_u32 v3, s{sB}, v3")
        e("v_mov_b32 v4, 0\nv_mov_b32 v5, 0\nv_mov_b32 v6, 0\nv_mov_b32 v7, 0")
        e(f"s_waitcnt lgkmcnt(0)\ns_lshl_b32 s{sL}, s{sL}, 16\nv_writelane_b32 v7, s{sL}, 33")
        e(f"s_mov_b64 s[{sEX}:{sEX+1}], exec\ns_mov_b32 exec_lo, -1\ns_mov_b32 exec_hi, 3")
        e("ds_write_b128 v3, v[4:7]")
        self.lane0_end()

    def cv_stage_u(self):
        e = self
        e("v_lshlrev_b32 v3, 7, v0\nv_mov_b32 v4, 32")
        e(f"s_movk_i32 s{sT}, 256\nv_writelane_b32 v4, s{sT}, 1")
        self.stamp(3)
        self.poll(5, 3, self.R("dbg"), 0, 4, 2)
        self.stamp(4)
        e(f"s_add_u32 s{sA}, s{sA}, {WS_UR:#x}")
        e(f"s_add_u32 m0, s{sB}, {CV_UR}\ns_nop 0")
        for j in range(4):
            e(f"buffer_load_dwordx4 v1, {self.R('ws')}, s{sA} offen offset:{j*1024} sc1 lds")
        e("s_waitcnt vmcnt(0) lgkmcnt(0)")
        self.stamp(5)
        e("s_barrier")

    def conv_cwave(self):
        e = self
        ACC, A0, B0, AD = 16, 80, 144, 208
        vA, vB = 2, 6
        e(f"s_lshl_b32 s{sA}, s{sWG}, 2\ns_add_u32 s{sA}, s{sA}, s{sW4}")
        e(f"s_lshr_b32 s{sB}, s{sA}, 1\ns_lshl_b32 s{sB}, s{sB}, 2")
        e(f"s_add_u32 s{sH}, s{KARG['sd']}, s{sB}\ns_addc_u32 s{sJ}, s{KARG['sd']+1}, 0")
        e(f"s_load_dword s{sL}, s[{sH}:{sJ}], 0")
        e(f"s_lshl_b32 s{sB}, s{sW4}, 14\ns_add_u32 s{sB}, s{sB}, {CV_BASE}")
        e("v_and_b32 v8, 15, v0\nv_lshrrev_b32 v9, 4, v0")
        e("v_lshl_add_u32 v10, v9, 3, v8")
        e("v_and_b32 v11, 1, v8")
        e("v_add_u32 v12, v10, v11\nv_lshlrev_b32 v12, 1, v12")
        e(f"v_xor_b32 v11, 1, v11\nv_mul_u32_u24 v11, {CV_O}, v11")
        e(f"v_add3_u32 v{vA}, v12, v11, s{sB}")
        for i in range(1, 4):
            e(f"v_add_u32 v{vA+i}, {1024*i}, v{vA}")
        e("v_lshlrev_b32 v12, 4, v9\nv_lshlrev_b32 v11, 5, v8\nv_sub_u32 v12, v12, v11")
        e(f"s_add_u32 s{sC}, s{sB}, {CV_UR + 4064 - 3584}")
        e(f"v_add_u32 v{vB}, s{sC}, v12")
        e("v_sub_u32 v10, 15, v10\nv_ashrrev_i32 v11, 1, v10\nv_and_b32 v10, 1, v10\nv_lshlrev_b32 v10, 4, v10")
        e(f"s_waitcnt lgkmcnt(0)\ns_and_b32 s{sT}, s{sA}, 1\ns_lshl_b32 s{sT}, s{sT}, 4")
        e(f"s_lshr_b32 s{sL}, s{sL}, s{sT}\ns_and_b32 s{sL}, s{sL}, 0xffff")
        e(f"v_lshlrev_b32 v10, v10, s{sL}")
        for w in range(4):
            e(f"v_cmp_eq_u32 vcc, {w}, v11\ns_nop 1\nv_cndmask_b32 v{AD+w}, 0, v10, vcc")
        self.fh_addr(sD)
        e(f"v_mov_b32 v12, s{sD}\nv_mov_b32 v13, 1")

        def reads(s):
            A, B = A0 + 32 * s, B0 + 32 * s
            ra, rb = [], []
            for p in range(8):
                o = 128 * (p & 1)
                ra.append([f"ds_read2_b32 v[{A+4*p}:{A+4*p+1}], v{vA+p//2} offset0:{o} offset1:{o+1}",
                           f"ds_read2_b32 v[{A+4*p+2}:{A+4*p+3}], v{vA+p//2} offset0:{o+2} offset1:{o+3}"])
                rb.append(f"ds_read_b128 v[{B+4*p}:{B+4*p+3}], v{vB} offset:{512*(7-p)}")
            out = []
            for p in range(8):
                out += [rb[p]] + ra[p]
            return out

        def mfmas(s):
            A, B = A0 + 32 * s, B0 + 32 * s
            return [f"v_mfma_f32_16x16x32_bf16 v[{ACC+4*(p+q)}:{ACC+4*(p+q)+3}], v[{A+4*p}:{A+4*p+3}], "
                    f"v[{B+4*q}:{B+4*q+3}], v[{ACC+4*(p+q)}:{ACC+4*(p+q)+3}]"
                    for p in range(8) for q in range(8 - p)]
        bump = [f"v_add_u32 v{r}, 64, v{r}" for r in (vB, vA, vA + 1, vA + 2, vA + 3)]
        self.stamp(5)
        e("s_barrier")
        self.stamp(6)
        for x in reads(0):
            e(x)
        e("s_waitcnt lgkmcnt(0)")
        for t in range(8):
            e(f"v_mfma_f32_16x16x32_bf16 v[{ACC+4*t}:{ACC+4*t+3}], v[{AD}:{AD+3}], v[{B0+4*t}:{B0+4*t+3}], 0")
        e(f"s_mov_b32 s{sK}, 0")
        e("L_cv_loop:")
        self.interleave(mfmas(0), bump + reads(1))
        e("s_waitcnt lgkmcnt(0)")
        self.interleave(mfmas(1), bump + reads(0))
        e(f"s_cmp_eq_u32 s{sK}, {self.opt['hflag_iter']}\ns_cbranch_scc1 L_cv_extra")
        e("L_cv_back:")
        e(f"s_add_u32 s{sK}, s{sK}, 1\ns_cmp_lt_u32 s{sK}, 4")
        e("s_waitcnt lgkmcnt(0)")
        e("s_cbranch_scc1 L_cv_loop")
        e("s_branch L_cv_done")
        e("L_cv_extra:")
        e(f"s_cmp_ge_u32 s{sI}, 28\ns_cbranch_scc1 L_cv_back")
        self.stamp(7)
        e("s_waitcnt vmcnt(0)")
        self.stamp(8)
        self.lane0_begin()
        e(f"buffer_store_dword v13, v12, {self.R('ws')}, 0 offen sc1")
        self.lane0_end()
        e("s_nop 3")
        e("s_branch L_cv_back")
        e("L_cv_done:")
        self.stamp(9)
        e("v_and_b32 v10, 1, v9\nv_lshlrev_b32 v10, 9, v10")
        e("v_lshrrev_b32 v11, 1, v9\nv_lshl_add_u32 v10, v11, 6, v10")
        e("v_lshrrev_b32 v11, 2, v8\nv_lshl_add_u32 v10, v11, 7, v10")
        e("v_and_b32 v11, 3, v8\nv_lshl_add_u32 v10, v11, 4, v10")
        e(f"s_lshl_b32 s{sA}, s{sA}, 12\ns_add_u32 s{sA}, s{sA}, {WS_YT:#x}")
        for tp in range(4):
            d = A0 + 4 * tp
            a = ACC + 8 * tp
            for c in range(4):
                e(f"v_cvt_pk_bf16_f32 v{d+c}, v{a+2*c}, v{a+2*c+1}")
            e("s_nop 1")
            e(f"v_permlane16_swap_b32 v{d}, v{d+2}\nv_permlane16_swap_b32 v{d+1}, v{d+3}")
            e(f"buffer_store_dwordx4 v[{d}:{d+3}], v10, {self.R('ws')}, s{sA} offen offset:{tp*1024} sc1")
        self.stamp(10)

    def g2_lwave(self):
        e = self
        self.srd("w2")
        vH, vW = 8, 12
        e(f"v_lshlrev_b32 v{vH}, 4, v0")
        e("v_lshrrev_b32 v1, 4, v0\nv_and_b32 v2, 15, v0\nv_lshlrev_b32 v3, 1, v1\nv_xor_b32 v2, v2, v3")
        e("v_lshlrev_b32 v2, 4, v2\nv_lshl_add_u32 v2, v1, 11, v2\nv_xor_b32 v3, 128, v2")
        for j in range(4):
            e(f"v_add_u32 v{vW+j}, {j*8192 - j*1024}, v{2+(j&1)}")
        e(f"s_mul_i32 s{sA}, s{sMI2}, {112*8192}\ns_mul_i32 s{sT}, s{sKH}, {28*16384}\ns_add_u32 s{sA}, s{sA}, s{sT}")
        e(f"s_lshl_b32 s{sG}, s{sW4}, 12\ns_add_u32 s{sA}, s{sA}, s{sG}")
        if WS_H:
            e(f"s_add_u32 s{sA}, s{sA}, {WS_H:#x}")
        e(f"s_mul_i32 s{sB}, s{sKH}, {1792*2048}\ns_lshl_b32 s{sT}, s{sNJ}, 8\ns_add_u32 s{sB}, s{sB}, s{sT}")
        e(f"s_lshl_b32 s{sT}, s{sW4}, 15\ns_add_u32 s{sB}, s{sB}, s{sT}")
        if self.opt["rot2"]:
            e(f"s_mul_i32 s{sC}, s{sMI2}, 7\ns_lshr_b32 s{sC}, s{sC}, 2")
            if self.opt["rot2"] == 1:
                e(f"s_add_u32 s{sC}, s{sC}, s{sNJ}")
            e(f"s_sub_u32 s{sT}, s{sC}, 28\ns_cmp_ge_u32 s{sC}, 28\ns_cselect_b32 s{sC}, s{sT}, s{sC}")
        else:
            e(f"s_mov_b32 s{sC}, 0")

        def nxt(s):
            e(f"s_add_u32 s{s}, s{s}, 1\ns_cmp_eq_u32 s{s}, 28\ns_cselect_b32 s{s}, 0, s{s}")

        def issue_w(sk, m0expr):
            e(f"s_lshl_b32 s{sF}, s{sk}, 17\ns_add_u32 s{sF}, s{sF}, s{sB}")
            e(m0expr + "\ns_nop 0")
            for j in range(4):
                e(f"buffer_load_dwordx4 v{vW+j}, {self.R('w2')}, s{sF} offen offset:{j*1024} lds")

        def issue_h(sk, m0expr):
            e(f"s_lshl_b32 s{sE}, s{sk}, 14\ns_add_u32 s{sE}, s{sE}, s{sA}")
            e(m0expr + "\ns_nop 0")
            for j in range(4):
                e(f"buffer_load_dwordx4 v{vH}, {self.R('ws')}, s{sE} offen offset:{j*1024} sc1 lds")
        e(f"s_mov_b32 s{sJ}, s{sC}")
        for st in range(3):
            issue_w(sJ, f"s_add_u32 m0, s{sG}, {st*G2_SLOT+16384}")
            nxt(sJ)
        e(f"s_lshl_b32 s{sD}, s{sMI2}, 1\ns_add_u32 s{sD}, s{sD}, s{sKH}\ns_lshl_b32 s{sD}, s{sD}, 7")
        e(f"s_add_u32 s{sD}, s{sD}, {WS_FH:#x}")
        e("v_and_b32 v3, 31, v0\nv_lshlrev_b32 v3, 2, v3\nv_mov_b32 v4, 1")
        self.stamp(6)
        self.poll(5, 3, self.R("ws"), f"s{sD}", 4, 28)
        self.stamp(7)
        for st in range(3):
            issue_h(sC, f"s_add_u32 m0, s{sG}, {st*G2_SLOT}")
            nxt(sC)
        e(f"s_add_u32 s{sD}, s{sG}, {3*G2_SLOT}")
        e(f"s_mov_b32 s{sK}, 0")
        e("s_waitcnt vmcnt(8)")
        self.stamp(8)
        e("s_branch L_g2l_bar")
        e("L_g2l_first:")
        e("s_waitcnt vmcnt(12)")
        e("L_g2l_loop:")
        e("s_waitcnt vmcnt(16)")
        e("L_g2l_bar:")
        e("s_barrier")
        e(f"s_cmp_eq_u32 s{sK}, 20\ns_cbranch_scc1 L_g2l_ypoll")
        e("L_g2l_issue:")
        issue_h(sC, f"s_mov_b32 m0, s{sD}")
        issue_w(sC, f"s_add_u32 m0, s{sD}, 16384")
        nxt(sC)
        e(f"s_add_u32 s{sD}, s{sD}, {G2_SLOT}\ns_and_b32 s{sD}, s{sD}, {4*G2_SLOT-1:#x}")
        e(f"s_add_u32 s{sK}, s{sK}, 1\ns_cmp_eq_u32 s{sK}, 1\ns_cbranch_scc1 L_g2l_first")
        e(f"s_cmp_lt_u32 s{sK}, 25\ns_cbranch_scc1 L_g2l_loop")
        e("s_branch L_g2l_tail")
        e("L_g2l_ypoll:")
        e(f"s_lshl_b32 s{sH}, s{sNJ}, 7\ns_add_u32 s{sH}, s{sH}, {WS_FY:#x}")
        e(f"buffer_load_dword v5, v3, {self.R('ws')}, s{sH} offen sc1")
        e("s_branch L_g2l_issue")
        e("L_g2l_tail:")
        e("v_lshrrev_b32 v1, 4, v0\nv_and_b32 v2, 15, v0\nv_xor_b32 v2, v2, v1\nv_lshlrev_b32 v2, 4, v2")
        e("v_lshl_add_u32 v2, v1, 11, v2")
        for j in range(4):
            e(f"v_xor_b32 v6, {j*64}, v2\nv_add_u32 v{16+j}, {j*8192 - j*1024}, v6")
        e("v_lshrrev_b32 v6, 3, v0\nv_and_b32 v2, 7, v0\nv_xor_b32 v2, v2, v1\nv_lshlrev_b32 v2, 4, v2")
        e("v_lshl_add_u32 v2, v6, 12, v2")
        for j in range(4):
            e(f"v_add_u32 v{20+j}, {j*32768 - j*1024}, v2")
        e(f"s_lshl_b32 s{sE}, s{sMI2}, 1\ns_add_u32 s{sE}, s{sE}, s{sKH}")
        e(f"s_lshl_b32 s{sF}, s{sE}, 17\ns_lshl_b32 s{sT}, s{sW4}, 15\ns_add_u32 s{sF}, s{sF}, s{sT}")
        e(f"s_lshl_b32 s{sT}, s{sNJ}, 8\ns_add_u32 s{sF}, s{sF}, s{sT}")
        e(f"s_add_u32 m0, s{sG}, {EP_Q}\ns_nop 0")
        for j in range(4):
            e(f"buffer_load_dwordx4 v{16+j}, {self.R('q')}, s{sF} offen offset:{j*1024} lds")
        e(f"s_lshl_b32 s{sE}, s{sE}, 7\ns_lshl_b32 s{sT}, s{sNJ}, 19\ns_add_u32 s{sE}, s{sE}, s{sT}")
        e(f"s_lshl_b32 s{sT}, s{sW4}, 17\ns_add_u32 s{sE}, s{sE}, s{sT}\ns_add_u32 s{sE}, s{sE}, {WS_YT:#x}")
        e("v_cmp_ne_u32 vcc, v5, v4\ns_nop 0")
        e("s_cmp_eq_u32 vcc_lo, 0\ns_cbranch_scc1 L_g2l_yok")
        self.poll(5, 3, self.R("ws"), f"s{sH}", 4, 32)
        e("L_g2l_yok:")
        e(f"s_add_u32 m0, s{sG}, {EP_Y}\ns_nop 0")
        for j in range(4):
            e(f"buffer_load_dwordx4 v{20+j}, {self.R('ws')}, s{sE} offen offset:{j*1024} sc1 lds")
        e("s_waitcnt vmcnt(24)\ns_barrier")
        e("s_waitcnt vmcnt(16)\ns_barrier")
        e("s_waitcnt vmcnt(8)\ns_barrier")
        e("s_waitcnt vmcnt(0)")
        self.stamp(9)
        e("s_barrier")

    def g2_cwave(self):
        e = self
        ACC, SA, SB = 128, 16, 48
        vHK, vHS, vWA = 2, 3, 4
        e(f"s_lshr_b32 s{sA}, s{sW4}, 1\ns_and_b32 s{sB}, s{sW4}, 1")
        e(f"s_lshl_b32 s{sC}, s{sKH}, 12\ns_lshl_b32 s{sT}, s{sA}, 11\ns_add_u32 s{sC}, s{sC}, s{sT}")
        e(f"v_lshlrev_b32 v1, 4, v0\nv_add_u32 v{vHK}, s{sC}, v1\nv_xor_b32 v{vHS}, 4096, v{vHK}")
        e("v_and_b32 v8, 15, v0\nv_lshrrev_b32 v9, 4, v0")
        e("v_lshrrev_b32 v10, 2, v0")
        e("v_and_b32 v11, 3, v0\nv_lshlrev_b32 v11, 3, v11\nv_lshl_add_u32 v11, v10, 8, v11")
        e("v_add_u32 v11, 16384, v11")
        e(f"s_lshl_b32 s{sT}, s{sB}, 2\nv_and_b32 v10, 7, v10\nv_xor_b32 v10, s{sT}, v10")
        for t in range(4):
            e(f"v_xor_b32 v12, {t}, v10\nv_lshl_add_u32 v{vWA+t}, v12, 5, v11")
        for r in range(64):
            e(f"v_mov_b32 v{ACC+r}, 0")

        def reads(S, par, ks):
            o = par * G2_SLOT + ks * 8192
            r = []
            for t in range(4):
                for hh in range(2):
                    d = S + 16 + 4 * t + 2 * hh
                    r.append(f"ds_read_b64_tr_b16 v[{d}:{d+1}], v{vWA+t} offset:{o+hh*4096}")
            xs = [f"ds_read_b128 v[{S+4*j}:{S+4*j+3}], v{vHK+(j>>1)} offset:{o+(j&1)*1024}" for j in range(4)]
            return r[:2] + xs + r[2:]

        def acc(t, j):
            return ACC + 4 * ((j >> 1) * 8 + t * 2 + (j & 1))

        def mfmas(S, order=None):
            order = order or [(t, j) for t in range(4) for j in range(4)]
            return [f"v_mfma_f32_16x16x32_bf16 v[{acc(t,j)}:{acc(t,j)+3}], v[{S+16+4*t}:{S+19+4*t}], "
                    f"v[{S+4*j}:{S+4*j+3}], v[{acc(t,j)}:{acc(t,j)+3}]" for t, j in order]
        bump = [f"v_xor_b32 v{r}, 0x10000, v{r}" for r in (vWA, vHK, vHS, vWA + 1, vWA + 2, vWA + 3)]
        e(f"s_mov_b32 s{sK}, 0")
        self.stamp(11)
        e("s_barrier")
        self.stamp(12)
        for x in reads(SA, 0, 0):
            e(x)
        e("L_g2c_loop:")
        e("s_waitcnt lgkmcnt(0)")
        self.interleave(mfmas(SA), reads(SB, 0, 1))
        e(f"s_sub_u32 s{sT}, s{sK}, 2\ns_cmp_lt_u32 s{sT}, 2\ns_cbranch_scc1 L_g2c_extra")
        e("L_g2c_back:")
        e("s_waitcnt lgkmcnt(0)\ns_barrier")
        self.interleave(mfmas(SB), reads(SA, 1, 0))
        e("s_waitcnt lgkmcnt(0)")
        self.interleave(mfmas(SA), reads(SB, 1, 1))
        e(f"s_cmp_eq_u32 s{sK}, 13\ns_cbranch_scc1 L_g2c_last")
        e("s_waitcnt lgkmcnt(0)\ns_barrier")
        m = mfmas(SB)
        self.interleave(m[:3], bump, per=2)
        self.interleave(m[3:], reads(SA, 0, 0))
        e(f"s_add_u32 s{sK}, s{sK}, 1\ns_branch L_g2c_loop")
        e("L_g2c_extra:\ns_waitcnt vmcnt(0)")
        e(f"s_sub_u32 s{sT}, s{sK}, s{sWAVE}\ns_cmp_lg_u32 s{sT}, 3\ns_cbranch_scc1 L_g2c_back")
        e(f"s_lshl_b32 s{sT}, s{sWG}, 2\ns_add_u32 s{sT}, s{sT}, {WS_FY:#x}\nv_mov_b32 v10, s{sT}\nv_mov_b32 v11, 1")
        self.lane0_begin()
        e(f"buffer_store_dword v11, v10, {self.R('ws')}, 0 offen sc1")
        self.lane0_end()
        e("s_branch L_g2c_back")
        e("L_g2c_last:")
        e("s_waitcnt lgkmcnt(0)")
        send_first = [(t, j) for t in range(4) for j in (2, 3)] + [(t, j) for t in range(4) for j in (0, 1)]
        for x in mfmas(SB, send_first):
            e(x)
        self.stamp(13)
        self.srd("out")
        e(f"s_lshl_b32 s{sC}, s{sWG}, 15\ns_lshl_b32 s{sT}, s{sW4}, 13\ns_add_u32 s{sC}, s{sC}, s{sT}")
        e(f"s_add_u32 s{sC}, s{sC}, {WS_PX:#x}\ns_add_u32 s{sD}, s{sC}, 0x1000")
        for n in range(8):
            a = ACC + 32 + 4 * n
            e(f"buffer_store_dwordx4 v[{a}:{a+3}], v1, {self.R('ws')}, s{sC if n < 4 else sD} offen offset:{(n%4)*1024} sc1")
        e(f"s_lshl_b32 s{sE}, s{sMI2}, 2\ns_lshl_b32 s{sT}, s{sKH}, 1\ns_add_u32 s{sE}, s{sE}, s{sT}\ns_add_u32 s{sE}, s{sE}, s{sA}")
        e(f"s_lshl_b32 s{sF}, s{sE}, 8\ns_add_u32 s{sF}, s{sF}, {WS_G:#x}")
        e("v_lshlrev_b32 v10, 3, v8")
        for j in range(2):
            e(f"buffer_load_dwordx2 v[{12+2*j}:{13+2*j}], v10, {self.R('ws')}, s{sF} offen offset:{128*j} sc1")
        e(f"s_lshl_b32 s{sF}, s{sWG}, 7\ns_lshl_b32 s{sT}, s{sW4}, 2\ns_add_u32 s{sF}, s{sF}, s{sT}\ns_add_u32 s{sF}, s{sF}, {WS_FX:#x}")
        e("v_mov_b32 v2, 0\nv_mov_b32 v3, 1")
        e(f"s_lshl_b32 s{sT}, s{sB}, 3\nv_lshrrev_b32 v10, 1, v9\nv_or_b32 v10, s{sT}, v10\nv_xor_b32 v10, v10, v8")
        e("v_and_b32 v11, 1, v9\nv_lshlrev_b32 v11, 3, v11\nv_lshl_add_u32 v11, v8, 8, v11")
        e(f"s_lshl_b32 s{sT}, s{sA}, 13\ns_add_u32 s{sT}, s{sT}, {EP_Q}\nv_add_u32 v11, s{sT}, v11")
        for t in range(4):
            e(f"v_xor_b32 v4, {2*t}, v10\nv_lshl_add_u32 v{16+t}, v4, 4, v11")
        e("v_lshrrev_b32 v10, 2, v0\nv_lshrrev_b32 v11, 3, v0\nv_and_b32 v11, 3, v11")
        e(f"s_lshl_b32 s{sT}, s{sA}, 1\nv_and_b32 v4, 2, v0\nv_lshlrev_b32 v4, 1, v4\nv_or_b32 v4, s{sT}, v4")
        e("v_xor_b32 v11, v11, v4\nv_and_b32 v4, 1, v0\nv_lshlrev_b32 v4, 3, v4\nv_lshl_add_u32 v4, v10, 7, v4")
        e(f"s_lshl_b32 s{sT}, s{sB}, 13\ns_add_u32 s{sT}, s{sT}, {EP_Y}\nv_add_u32 v4, s{sT}, v4")
        e("v_lshl_add_u32 v20, v11, 4, v4\nv_xor_b32 v21, 16, v20")
        e("s_barrier")
        QR, YR, PR = 24, 40, 64
        for t in range(4):
            for j in range(2):
                n = 2 * t + j
                e(f"ds_read_b64 v[{QR+2*n}:{QR+2*n+1}], v{16+t} offset:{j*4096}")
                e(f"ds_read_b64_tr_b16 v[{YR+2*n}:{YR+2*n+1}], v{20+j} offset:{t*2048}")
        e("s_waitcnt vmcnt(0)")
        self.lane0_begin()
        e(f"buffer_store_dword v3, v2, {self.R('ws')}, s{sF} offen sc1")
        self.lane0_end()
        self.stamp(14)
        e("s_waitcnt lgkmcnt(0)")
        for n in range(8):
            j = n & 1
            a = ACC + 4 * n
            for h in range(2):
                e(f"v_lshlrev_b32 v56, 16, v{QR+2*n+h}\nv_and_b32 v57, 0xffff0000, v{QR+2*n+h}")
                e(f"v_lshlrev_b32 v58, 16, v{YR+2*n+h}\nv_and_b32 v59, 0xffff0000, v{YR+2*n+h}")
                e("v_pk_mul_f32 v[56:57], v[56:57], v[58:59]")
                e(f"v_pk_mul_f32 v[56:57], v[56:57], v[{12+2*j}:{13+2*j}] op_sel_hi:[1,0]")
                e(f"v_pk_fma_f32 v[{a+2*h}:{a+2*h+1}], v[{a+2*h}:{a+2*h+1}], v[{12+2*j}:{13+2*j}], v[56:57] op_sel:[0,1,0] op_sel_hi:[1,1,1]")
        e("v_lshrrev_b32 v10, 1, v9\nv_and_b32 v11, 7, v8\nv_xor_b32 v10, v10, v11")
        e("v_and_b32 v11, 1, v9\nv_lshlrev_b32 v11, 3, v11\nv_lshl_add_u32 v11, v8, 7, v11")
        e(f"s_lshl_b32 s{sT}, s{sW4}, 12\nv_add_u32 v11, s{sT}, v11")
        for t in range(4):
            e(f"v_xor_b32 v4, {2*t}, v10\nv_lshl_add_u32 v{16+t}, v4, 4, v11")
        e("v_lshrrev_b32 v10, 3, v0\nv_and_b32 v11, 7, v0\nv_xor_b32 v4, v10, v11\nv_lshlrev_b32 v4, 4, v4")
        e(f"v_lshl_add_u32 v4, v10, 7, v4\nv_add_u32 v20, s{sT}, v4")
        e("v_lshlrev_b32 v11, 4, v11\nv_lshl_add_u32 v21, v10, 11, v11")
        e(f"s_lshl_b32 s{sE}, s{sE}, 16\ns_lshl_b32 s{sT}, s{sNJ}, 8\ns_add_u32 s{sE}, s{sE}, s{sT}")
        e(f"s_lshl_b32 s{sT}, s{sB}, 7\ns_add_u32 s{sE}, s{sE}, s{sT}")
        e(f"s_xor_b32 s{sF}, s{sF}, 128\ns_xor_b32 s{sC}, s{sC}, 0x8000\ns_xor_b32 s{sD}, s{sD}, 0x8000")
        self.stamp(15)
        self.poll(5, 2, self.R("ws"), f"s{sF}", 3, 1)
        self.stamp(16)
        for n in range(8):
            e(f"buffer_load_dwordx4 v[{PR+4*n}:{PR+4*n+3}], v1, {self.R('ws')}, s{sC if n < 4 else sD} offen offset:{(n%4)*1024} sc1")
        for n in range(8):
            t, j = n >> 1, n & 1
            a, p = ACC + 4 * n, PR + 4 * n
            e(f"s_waitcnt vmcnt({7-n})")
            for h in range(2):
                e(f"v_pk_fma_f32 v[{a+2*h}:{a+2*h+1}], v[{p+2*h}:{p+2*h+1}], v[{12+2*j}:{13+2*j}], v[{a+2*h}:{a+2*h+1}] op_sel:[0,1,0] op_sel_hi:[1,1,1]")
            e(f"v_cvt_pk_bf16_f32 v{p}, v{a}, v{a+1}\nv_cvt_pk_bf16_f32 v{p+1}, v{a+2}, v{a+3}")
            e(f"ds_write_b64 v{16+t}, v[{p}:{p+1}] offset:{j*2048}")
        e("s_waitcnt lgkmcnt(0)")
        self.stamp(17)
        for n in range(4):
            e(f"ds_read_b128 v[{QR+4*n}:{QR+4*n+3}], v20 offset:{n*1024}")
        for n in range(4):
            e(f"s_waitcnt lgkmcnt({3-n})")
            e(f"buffer_store_dwordx4 v[{QR+4*n}:{QR+4*n+3}], v21, {self.R('out')}, s{sE} offen")
            e(f"s_add_u32 s{sE}, s{sE}, 0x4000")
        self.stamp(18)

    def build(self):
        e = self
        hdr = open(f"cdna_kernels/{NAME}.s.ref").read().split("; Override launch")[0]
        head = hdr + f"; @launch grid=(256,1,1) block=(512,1,1) lds={LDS_BYTES}\n"
        head += '.amdgcn_target "amdgcn-amd-amdhsa--gfx950"\n.text\n'
        head += f".globl {NAME}_kernel\n.p2align 8\n.type {NAME}_kernel,@function\n{NAME}_kernel:\n"
        self.prologue()
        self.gate()
        e(f"s_cmp_ge_u32 s{sI}, 28\ns_cbranch_scc1 L_prep")
        e(f"s_mov_b32 s{sC}, {G1_SLOT:#x}")
        self.g1_cwave()
        e("L_conv_c:")
        self.conv_cwave()
        self.g2_cwave()
        e("s_branch L_fin")
        e("L_lwave:")
        e(f"s_cmp_ge_u32 s{sI}, 28\ns_cbranch_scc1 L_prep")
        self.g1_lwave()
        e("L_conv_l:")
        self.cv_stage_u()
        self.g2_lwave()
        e("s_branch L_fin")
        e("L_prep:")
        self.stamp(1)
        self.prep()
        self.stamp(2)
        e(f"s_cmp_lt_u32 s{sWAVE}, 4\ns_cbranch_scc1 L_conv_c")
        self.srd("dbg")
        e(f"s_cmp_lg_u32 s{sWAVE}, 4\ns_cbranch_scc1 L_prep_nosig")
        e("v_lshlrev_b32 v1, 7, v0\nv_mov_b32 v2, 1")
        e(f"s_mov_b64 s[{sEX}:{sEX+1}], exec\ns_mov_b64 exec, 3")
        e(f"buffer_atomic_add v2, v1, {self.R('dbg')}, 0 offen sc1")
        self.lane0_end()
        e("L_prep_nosig:")
        self.cv_stage_h()
        e("s_branch L_conv_l")
        e("L_fin:")
        if self.prof:
            self.stamp_cyc(61)
            self.stamp(62)
            e(f"s_getreg_b32 s{sT}, hwreg(HW_REG_XCC_ID)\nv_writelane_b32 v{vST}, s{sT}, 63")
            e(f"s_lshl_b32 s{sA}, s{sWG}, 3\ns_add_u32 s{sA}, s{sA}, s{sWAVE}\ns_lshl_b32 s{sA}, s{sA}, 8")
            e(f"s_add_u32 s{sA}, s{sA}, {WS_ST:#x}\nv_lshlrev_b32 v1, 2, v0")
            e(f"buffer_store_dword v{vST}, v1, {self.R('ws')}, s{sA} offen")
        e("L_end:\ns_endpgm")
        tail = f""".section .rodata,"a"
.p2align 6
.amdhsa_kernel {NAME}_kernel
  .amdhsa_next_free_vgpr 256
  .amdhsa_next_free_sgpr 102
  .amdhsa_accum_offset 256
  .amdhsa_group_segment_fixed_size 0
  .amdhsa_kernarg_size 104
  .amdhsa_user_sgpr_count 2
  .amdhsa_user_sgpr_kernarg_segment_ptr 1
  .amdhsa_system_sgpr_workgroup_id_x 1
  .amdhsa_float_denorm_mode_32 3
.end_amdhsa_kernel
"""
        return head + "\n".join(self.L) + "\n" + tail


if __name__ == "__main__":
    opt = {}
    out = f"cdna_kernels/{NAME}.s"
    prof = False
    for a in sys.argv[1:]:
        if a == "prof":
            prof = True
        elif a.startswith("out="):
            out = a[4:]
        else:
            k, v = a.split("=")
            opt[k] = int(v)
    open(out, "w").write(Gen(prof=prof, **opt).build())
    print("wrote", out)
```

```python
import sys

NAME = "gated_mix__ssm_conv_h3__dense_activation_relu__prompt"

WS_H = 0x0000000
WS_UR = 0x1000000
WS_YT = 0x1400000
WS_PX = 0x1800000
WS_G = 0x2000000
WS_FL = 0x2040000
FL_X, FL_P, FL_Y, FL_2 = 0, 512, 640, 768
WS_ST = 0x2100000
WS_SIZE = 0x10000000

G1_SLOT = 49152
CV_BASE = 98304
CV_O = 4160
CV_UR = 8320
G2_SLOT = 32768
EP_G = 49152
EP_Q = 131072
EP_Y = 131072 + 16384
LDS_VERD = CV_BASE + 3 * 16384 + 16000
PREP_LDS = 3 * G1_SLOT
LDS_BYTES = 163840

sWG, sT, sWAVE, sX, sI, sW4 = 2, 3, 4, 5, 6, 7
SRD = dict(q=8, w1=12, w2=16, ws=20, out=24, dbg=28, k=32, v=36, sk=40, gw=44, shk=48, bx=32, hst=32)
KARG = dict(q=64, k=66, v=68, shk=70, sk=72, sd=74, bx=76, w1=78, w2=80, gw=82, out=84, dbg=86, ws=88)
SIZE = dict(q=4194304, w1=7340032, w2=7340032, ws=WS_SIZE, out=4194304, dbg=256, k=4194304, v=4194304,
            sk=4194304, bx=4194304, gw=2048, shk=8192)
sMI1, sNI1, sMI2, sNJ, sKH = 52, 53, 54, 55, 56
sA, sB, sC, sD, sE, sF, sG = 57, 58, 59, 60, 61, 62, 63
sH, sJ, sK, sL, sM, sN = 90, 91, 92, 93, 94, 95
sS0, sS1 = 96, 97
sKH1, sOK = 98, 99
sPH, sMO = 46, 47
sYB, sPW = 76, 44
sCH, sWS, sWD, sFH, sV = 76, 77, 0, 1, 74
sEX = 98
vST = 255
SPIN_MAX = 200000


def add_pads(L, nchain=4, stride=480):
    import subprocess, re
    ins = [i for i, x in enumerate(L) if not x.endswith(":") and not x.strip().startswith(".")]
    src = '.amdgcn_target "amdgcn-amd-amdhsa--gfx950"\n.text\n' + NAME + "_kernel:\nL_pad0:\nL_pad1:\nL_pad2:\nL_pad3:\n"
    src += "\n".join(x for x in L if not x.strip().startswith(".")) + "\n"
    open("_pads.s", "w").write(src)
    subprocess.run(["clang", "-x", "assembler", "-target", "amdgcn-amd-amdhsa", "-mcpu=gfx950", "-c",
                    "_pads.s", "-o", "_pads.o"], check=True)
    dis = subprocess.run(["llvm-objdump", "-d", "--mcpu=gfx950", "_pads.o"],
                         capture_output=True, text=True).stdout
    size = [4 * len(m.group(1).split()) for m in re.finditer(r"// [0-9A-F]{12}: ([0-9A-F ]+)", dis)]
    assert len(size) == len(ins), (len(size), len(ins))
    size = dict(zip(ins, size))
    b, en = L.index("L_warm_begin:"), L.index("L_warm_end:")
    z0, z1 = L.index("L_cwave:"), L.index("L_hopdone:") + 1
    pos, run, best = [b + 1], 0, None
    i = b + 1
    while i < en:
        x = L[i].strip()
        sz = 60 if x.startswith(".p2align") else size.get(i, 0)
        if run >= stride - 120 and "mfma" in L[i - 1] and "mfma" in x:
            best = i
        if run + sz > stride:
            at = best if best is not None else i
            if z0 <= at <= z1:
                at = z1 + 1
            pos.append(at)
            i, run, best = at, 4, None
            if at == i and run + sz > stride:
                raise ValueError
            continue
        run += sz
        i += 1
    out = []
    ps = {p: n for n, p in enumerate(pos)}
    for i, x in enumerate(L):
        if i in ps:
            n = ps[i]
            out += [f"L_pad{n}:", "    s_cbranch_execz " + (f"L_pad{n+nchain}" if n + nchain < len(pos) else "L_hopdone")]
        out.append(x)
    return out


class Gen:
    def __init__(self, prof=False, **opt):
        self.L = []
        self.prof = prof
        self.opt = dict(tlb=0, xs=0, cst=7, g1k=1, zig=1, sent=0, ypre=1, npre=8, pw=0, lsr=1, nmix=10, fk=21, wl=0, wb4=1, lite=0, outsc='nt', hst='', ysc='sc1', psc='sc1', uwsc='sc1', pd=3, gd=3, hsc='sc1', wsc='', usc='sc1', early=3, st='3,6,7,0', map=0, prio=1, xbf=1, rot1=2, rot2=5, fast=1, ntsk=0, cpf=1, hop=1, xsleep=2, hsleep=2, touch=0, wsoff=0, sleep=6, stepst=0)
        self.opt.update(opt)
        self.nlab = 0

    def __call__(self, s):
        for line in s.split("\n"):
            line = line.strip()
            if line:
                self.L.append(line if line.endswith(":") else "    " + line)

    def lab(self, base):
        self.nlab += 1
        return f"L_{base}_{self.nlab}"

    def srd(self, *names):
        for n in names:
            r, k = SRD[n], KARG[n]
            off = self.opt["wsoff"] << 20 if n == "ws" else 0
            if off:
                self(f"s_add_u32 s{r}, s{k}, {off:#x}\ns_addc_u32 s{r+1}, s{k+1}, 0")
            else:
                self(f"s_mov_b64 s[{r}:{r+1}], s[{k}:{k+1}]")
            self(f"s_mov_b32 s{r+2}, {SIZE[n]-off:#x}")
            self(f"s_mov_b32 s{r+3}, 0x20000")

    def R(self, n):
        return f"s[{SRD[n]}:{SRD[n]+3}]"

    def stamp(self, idx):
        if not self.prof or (self.opt["lite"] and idx != 62):
            return
        self(f"s_memrealtime s[{sS0}:{sS1}]\ns_memtime s[100:101]\ns_waitcnt lgkmcnt(0)\nv_writelane_b32 v{vST}, s{sS0}, {idx}")
        if idx < 28:
            self(f"v_writelane_b32 v{vST}, s100, {idx+30}")

    def stamp_cyc(self, idx):
        if not self.prof or self.opt["lite"]:
            return
        self(f"s_memtime s[{sS0}:{sS1}]\ns_waitcnt lgkmcnt(0)\nv_writelane_b32 v{vST}, s{sS0}, {idx}")

    def stamp_step(self, base):
        if not self.prof or not self.opt["stepst"]:
            return
        self(f"s_memrealtime s[{sS0}:{sS1}]\ns_add_u32 m0, s{sK}, {base}\ns_waitcnt lgkmcnt(0)\nv_writelane_b32 v{vST-1}, s{sS0}, m0")

    def interleave(self, mf, other, start=0, per=1):
        o = list(other)
        for i, m in enumerate(mf):
            self(m)
            if i >= start:
                for _ in range(per):
                    if o:
                        self(o.pop(0))
        for x in o:
            self(x)

    def place(self, mf, items):
        for sl, x in items:
            if sl < 0:
                self(x)
        for i, m in enumerate(mf):
            self(m)
            for sl, x in items:
                if sl == i:
                    self(x)
        assert all(sl < len(mf) for sl, _ in items)

    def poll(self, vdst, vaddr, srd, soff, vexp, nl, cmp="ne", mask=None, sleep=None):
        lp, done = self.lab("poll"), self.lab("polldone")
        lanes = (1 << nl) - 1
        self(f"s_mov_b32 s{sN}, 0")
        self(f"{lp}:")
        self(f"buffer_load_dword v{vdst}, v{vaddr}, {srd}, {soff} offen sc1")
        self("s_waitcnt vmcnt(0)")
        if mask is not None:
            self(f"v_and_b32 v{vdst}, {mask}, v{vdst}")
        self(f"v_cmp_{cmp}_u32 vcc, v{vdst}, v{vexp}")
        self(f"s_add_u32 s{sN}, s{sN}, 1")
        self(f"s_and_b32 s{sM}, vcc_lo, {lanes:#x}")
        self(f"s_cbranch_scc0 {done}")
        self(f"s_sleep {sleep or self.opt['sleep']}")
        self(f"s_cmp_lt_u32 s{sN}, {SPIN_MAX}")
        self(f"s_cbranch_scc1 {lp}")
        self(f"{done}:")

    def lane0_begin(self):
        self("s_mov_b64 exec, 1")

    def lane0_end(self):
        self("s_mov_b64 exec, -1")

    def prologue(self):
        e = self
        assert self.opt["map"] == 0
        if self.opt.get("fixspan"):
            e("s_memrealtime s[100:101]")
        if self.prof:
            e("s_memrealtime s[96:97]")
        e("s_load_dwordx16 s[64:79], s[0:1], 0")
        e("s_load_dwordx8 s[80:87], s[0:1], 64")
        e("s_load_dwordx2 s[88:89], s[0:1], 96")
        e(f"s_cmp_ge_u32 s{sWG}, 256\ns_cbranch_scc1 L_end")
        e("v_lshrrev_b32 v1, 6, v0\nv_mov_b32 v4, v0\nv_and_b32 v0, 63, v0")
        e(f"v_readfirstlane_b32 s{sWAVE}, v1")
        e(f"s_and_b32 s{sX}, s{sWG}, 7\ns_lshr_b32 s{sI}, s{sWG}, 3\ns_and_b32 s{sKH}, s{sWG}, 1")
        e(f"s_mul_i32 s{sA}, s{sI}, 37\ns_lshr_b32 s{sA}, s{sA}, 8")
        e(f"s_sub_u32 s{sB}, s{sKH}, s{sA}\ns_mul_i32 s{sB}, s{sB}, 7\ns_add_u32 s{sNI1}, s{sB}, s{sI}")
        e(f"s_lshr_b32 s{sC}, s{sX}, 1\ns_lshl2_add_u32 s{sMI1}, s{sC}, s{sA}")
        e(f"s_and_b32 s{sW4}, s{sWAVE}, 3")
        if self.prof:
            e(f"v_mov_b32 v{vST}, 0\nv_mov_b32 v{vST-1}, 0")
        e(f"s_cmp_ge_u32 s{sWAVE}, 4\ns_cbranch_scc1 L_lwave")
        self.code_prefetch()

    def ids2(self):
        e = self
        e(f"s_and_b32 s{sNJ}, s{sI}, 7\ns_lshr_b32 s{sMI2}, s{sI}, 3\ns_lshr_b32 s{sT}, s{sX}, 1\ns_lshl2_add_u32 s{sMI2}, s{sT}, s{sMI2}")
        e(f"s_mov_b32 s{sKH1}, s{sKH}\nv_mov_b32 v252, 0\nv_mov_b32 v253, 1")

    def code_prefetch(self):
        e = self
        if self.opt["cpf"]:
            sh = self.opt["cst"]
            e(f"s_getpc_b64 s[{sH}:{sJ}]")
            e("L_pc:")
            e(f"v_lshlrev_b32 v2, {sh}, v4\nv_mov_b32 v5, s{sJ}")
            for j in range(8 - sh):
                if j:
                    e("v_add_u32 v2, 0x4000, v2")
                e(f"v_min_u32 v3, L_end-L_pc, v2")
                e(f"v_add_co_u32 v6, vcc, s{sH}, v3\ns_nop 1\nv_addc_co_u32 v7, vcc, 0, v5, vcc")
                e(f"global_load_dword v119, v[6:7], off")
        e("s_branch L_cwave")

    def kargs(self, first=("q", "ws")):
        self("s_waitcnt lgkmcnt(0)")
        if self.prof:
            self(f"v_writelane_b32 v{vST}, s96, 0")
        self.stamp(27)
        self.stamp_cyc(60)
        self.srd(*first)

    def channel(self, sd):
        self(f"s_lshl_b32 s{sd}, s{sX}, 5\ns_add_u32 s{sd}, s{sd}, s{sI}\ns_lshl_b32 s{sd}, s{sd}, 2\ns_add_u32 s{sd}, s{sd}, s{sW4}")

    def reset_flags(self, sHX):
        e = self
        self.srd("dbg")
        e(f"s_lshl_b32 s{sB}, s{sHX}, 13\ns_add_u32 s{sB}, s{sB}, {WS_FL:#x}\ns_add_u32 s{sC}, s{sB}, 0x1000\nv_lshlrev_b32 v2, 4, v0")
        e("v_mov_b32 v8, 0\nv_mov_b32 v9, 0\nv_mov_b32 v10, 0\nv_mov_b32 v11, 0")
        for j in range(8):
            e(f"buffer_store_dwordx4 v[8:11], v2, {self.R('ws')}, s{sB if j < 4 else sC} offen offset:{(j%4)*1024} sc1")
        e("s_waitcnt vmcnt(0)")
        self.lane0_begin()
        e(f"buffer_atomic_add v253, v252, {self.R('dbg')}, 0 offen sc1")
        self.lane0_end()

    def cnt_load(self, vd):
        self.srd("dbg")
        self(f"buffer_load_dword v{vd}, v252, {self.R('dbg')}, 0 offen sc1")

    def cnt_wait(self, vd, vt):
        e = self
        ok = self.lab("cntok")
        e(f"v_readfirstlane_b32 s{sM}, v{vd}\nv_mov_b32 v{vt}, 32\ns_nop 0")
        e(f"s_cmp_ge_u32 s{sM}, 32\ns_cbranch_scc1 {ok}")
        self.poll(vd, 252, self.R("dbg"), 0, vt, 1, cmp="lt", sleep=32)
        e(f"{ok}:")

    def id_line(self, sd):
        self(f"s_lshl_b32 s{sd}, s{sX}, 10\ns_add_u32 s{sd}, s{sd}, {WS_FL+64*1024+FL_2:#x}")

    def my_id(self, sd):
        self(f"s_getreg_b32 s{sd}, hwreg(HW_REG_XCC_ID, 0, 4)\ns_add_u32 s{sd}, s{sd}, 1")

    def publish_id(self, vt):
        e = self
        self.my_id(sM)
        e(f"v_mov_b32 v{vt}, s{sM}")
        self.id_line(sM)
        e(f"s_lshl_b32 s{sT}, s{sI}, 2\ns_add_u32 s{sM}, s{sM}, s{sT}")
        self.lane0_begin()
        e(f"buffer_store_dword v{vt}, v252, {self.R('ws')}, s{sM} offen")
        self.lane0_end()

    def gate(self):
        e = self
        GW, S = 152, 160
        Q = lambda r: 16 + 8 * r if r < 12 else 120 + 8 * (r - 12)
        self.srd("gw")
        e(f"s_lshl_b32 s{sA}, s{sX}, 2\ns_add_u32 s{sA}, s{sA}, s{sI}\ns_sub_u32 s{sA}, s{sA}, 28")
        e(f"s_lshl_b32 s{sB}, s{sA}, 2\ns_add_u32 s{sB}, s{sB}, s{sW4}\ns_lshl_b32 s{sC}, s{sB}, 15")
        for j in range(2):
            e(f"buffer_load_dwordx4 v[{GW+4*j}:{GW+3+4*j}], v1, {self.R('gw')}, 0 offen offset:{j*1024}")
        GD = self.opt["gd"]

        def ld(p):
            for j in range(4):
                d = Q(2 * p + j // 2) + 4 * (j % 2)
                e(f"buffer_load_dwordx4 v[{d}:{d+3}], v1, {self.R('q')}, s{sC} offen offset:{j*1024}")
            e(f"s_add_u32 s{sC}, s{sC}, 0x1000")
        dpps = ("row_shr:1", "row_shr:2", "row_shr:4", "row_shr:8", "row_bcast:15 row_mask:0xa", "row_bcast:31 row_mask:0xc")
        for p in range(GD):
            ld(p)
        M, D = 176, 180
        e("v_and_b32 v3, 15, v0\nv_lshrrev_b32 v4, 4, v0\nv_lshlrev_b32 v4, 2, v4\nv_sub_u32 v3, v3, v4\nv_mov_b32 v2, 0")
        for c in range(4):
            e(f"v_cmp_eq_u32 vcc, {c}, v3\ns_nop 1\nv_cndmask_b32 v{M+c}, 0, 1.0, vcc")
        for p in range(8):
            if p and p - 1 + GD < 8:
                ld(p - 1 + GD)
            e(f"s_waitcnt vmcnt({4*(min(7, p-1+GD)-p)})")
            for u in (2 * p, 2 * p + 1):
                d = D + 4 * (u % 4)
                for j in range(2):
                    e(f"v_mfma_f32_16x16x32_bf16 v[{d}:{d+3}], v[{GW+4*j}:{GW+4*j+3}], v[{Q(u)+4*j}:{Q(u)+4*j+3}], {f'v[{d}:{d+3}]' if j else 0}")
            if p % 2 == 1:
                r = 2 * p - 2
                e("s_nop 3")
                for u in range(4):
                    e(f"v_mul_f32 v{S+u}, v{D+4*u}, v{M}")
                    for c in range(1, 4):
                        e(f"v_fmac_f32 v{S+u}, v{D+4*u+c}, v{M+c}")
                for dpp in dpps:
                    for u in range(4):
                        e(f"v_add_f32_dpp v{S+u}, v{S+u}, v{S+u} {dpp}")
                for u in range(4):
                    e(f"v_readlane_b32 s{sD+u}, v{S+u}, 63")
                e("s_nop 1")
                for u in range(4):
                    e(f"v_writelane_b32 v2, s{sD+u}, {r+u}")
        e("v_cvt_pk_bf16_f32 v2, 0, v2\nv_mul_f32 v2, 0xbfb8aa3b, v2\nv_exp_f32 v2, v2\ns_nop 0")
        e("v_add_f32 v2, 1.0, v2\nv_rcp_f32 v2, v2\ns_nop 0")
        e("v_cvt_pk_bf16_f32 v4, 0, v2\nv_sub_f32 v2, 1.0, v4\nv_cvt_pk_bf16_f32 v5, 0, v2")
        e(f"s_lshl_b32 s{sB}, s{sB}, 7\ns_add_u32 s{sB}, s{sB}, {WS_G:#x}\nv_lshlrev_b32 v3, 3, v0")
        e("s_mov_b64 exec, 0xffff")
        e(f"buffer_store_dwordx2 v[4:5], v3, {self.R('ws')}, s{sB} offen sc1")
        self.lane0_end()

    def tlb_warm(self):
        e = self
        st = self.opt["tlb"] << 18
        jobs = [("w2", 0, SIZE["w2"]), ("sk", 0, SIZE["sk"]), ("out", 0, SIZE["out"]), ("ws", 0, 0x900000),
                ("ws", 0x900000, 0x1200000), ("ws", 0x1200000, 0x1b00000), ("ws", 0x1b00000, 0x2100000), ("w1", 0, SIZE["w1"])]
        e(f"s_sub_u32 s{sB}, s{sI}, 28\ns_mul_i32 s{sB}, s{sB}, {st}")
        for w, (nm, lo, hi) in enumerate(jobs):
            e(f"s_cmp_lg_u32 s{sWAVE}, {w}\ns_cbranch_scc1 L_tlb{w}")
            self.srd(nm)
            for o in list(range(lo, hi, 4 * st)):
                e(f"s_add_u32 s{sA}, s{sB}, {o:#x}\ns_min_u32 s{sA}, s{sA}, {hi-4:#x}\ns_buffer_load_dword s77, {self.R(nm)}, s{sA}")
            e(f"L_tlb{w}:")

    def prep(self):
        e = self
        self.srd("k", "v", "shk")
        KR, VR, W, WIN, TMP, OUT = 4, 80, 144, 176, 208, 224
        e(f"s_lshl_b32 s{sA}, s{sX}, 2\ns_add_u32 s{sA}, s{sA}, s{sI}\ns_sub_u32 s{sA}, s{sA}, 28")
        e(f"s_cmp_lg_u32 s{sWAVE}, 0\ns_cbranch_scc1 L_prep_noreset")
        self.reset_flags(sA)
        e("L_prep_noreset:")
        e(f"s_lshr_b32 s{sB}, s{sA}, 1")
        e(f"s_and_b32 s{sA}, s{sA}, 1\ns_lshl_b32 s{sA}, s{sA}, 3\ns_add_u32 s{sA}, s{sA}, s{sWAVE}")
        e(f"s_lshl_b32 s{sC}, s{sB}, 18\ns_lshl_b32 s{sD}, s{sA}, 7\ns_add_u32 s{sC}, s{sC}, s{sD}")
        e("v_lshrrev_b32 v1, 3, v0\nv_lshlrev_b32 v1, 15, v1\nv_and_b32 v2, 7, v0")
        e("v_lshl_add_u32 v1, v2, 4, v1")
        e(f"v_add_u32 v1, s{sC}, v1")
        e("v_subrev_u32 v3, 6144, v1")
        e("v_lshlrev_b32 v2, 6, v2")
        e(f"s_lshl_b32 s{sD}, s{sA}, 9")
        for j in range(4):
            e(f"buffer_load_dwordx4 v[{TMP+4*j}:{TMP+4*j+3}], v2, {self.R('shk')}, s{sD} offen offset:{16*j}")
        e(f"buffer_load_dwordx4 v[{KR}:{KR+3}], v3, {self.R('k')}, 0 offen")
        e(f"buffer_load_dwordx4 v[{KR+4}:{KR+7}], v3, {self.R('k')}, 0 offen offset:2048")
        e(f"s_movk_i32 s{sE}, 0x1000")
        e(f"buffer_load_dwordx4 v[{KR+8}:{KR+11}], v3, {self.R('k')}, s{sE} offen")
        PD = self.opt["pd"]

        def ld_row(j):
            if j % 2 == 0:
                e(f"s_movk_i32 s{sF}, {j*2048:#x}")
            o = (j % 2) * 2048
            e(f"buffer_load_dwordx4 v[{KR+12+4*j}:{KR+15+4*j}], v1, {self.R('k')}, s{sF} offen offset:{o}")
            e(f"buffer_load_dwordx4 v[{VR+4*j}:{VR+3+4*j}], v1, {self.R('v')}, s{sF} offen offset:{o}")
            if j == 15:
                self.cnt_load(250)
        for j in range(PD):
            ld_row(j)
        last = 1 if PD == 16 else 0
        e(f"s_lshl_b32 s{sE}, s{sWAVE}, 14")
        e("v_and_b32 v2, 7, v0\nv_lshrrev_b32 v3, 3, v0")
        e("v_lshlrev_b32 v3, 1, v3\nv_sub_u32 v3, 15, v3\nv_xor_b32 v3, v3, v2")
        e("v_lshlrev_b32 v3, 4, v3\nv_lshl_add_u32 v3, v2, 11, v3")
        e(f"v_add_u32 v2, s{sE}, v3")
        e("v_xor_b32 v3, 16, v2")
        e("s_setprio 1")
        e(f"s_waitcnt vmcnt({3+2*PD+last})")
        self.stamp(20)
        for ch in range(8):
            for hf in range(2):
                e(f"v_lshlrev_b32 v{W+8*(2*hf)+ch}, 16, v{TMP+2*ch+hf}")
                e(f"v_and_b32 v{W+8*(2*hf+1)+ch}, 0xffff0000, v{TMP+2*ch+hf}")

        def unpack(dst, src):
            for c in range(4):
                e(f"v_lshlrev_b32 v{dst+2*c}, 16, v{src+c}\nv_and_b32 v{dst+2*c+1}, 0xffff0000, v{src+c}")
        e(f"s_waitcnt vmcnt({2*PD+last})")
        for j in range(3):
            unpack(WIN + 8 * j, KR + 4 * j)
        KS = KR
        def outreg(ch):
            return OUT + 4 * ch if ch < 6 else KR + 8 + 4 * (ch - 6)
        for j in range(16):
            if j and j - 1 + PD < 16:
                ld_row(j - 1 + PD)
            top = min(15, j - 1 + PD)
            e(f"s_waitcnt vmcnt({2*(top-j)+(top==15)})")
            cur = WIN + 8 * ((j + 3) % 4)
            unpack(cur, KR + 12 + 4 * j)
            t = TMP + 8 * (j % 2)
            unpack(t, VR + 4 * j)
            for c in range(4):
                w3 = WIN + 8 * (j % 4) + 2 * c
                e(f"v_pk_mul_f32 v[{KS+2*c}:{KS+2*c+1}], v[{w3}:{w3+1}], v[{W+24+2*c}:{W+25+2*c}]")
            for tap in (2, 1, 0):
                for c in range(4):
                    wr = WIN + 8 * ((j + 3 - tap) % 4) + 2 * c
                    e(f"v_pk_fma_f32 v[{KS+2*c}:{KS+2*c+1}], v[{wr}:{wr+1}], v[{W+8*tap+2*c}:{W+8*tap+2*c+1}], v[{KS+2*c}:{KS+2*c+1}]")
            for c in range(4):
                e(f"v_pk_mul_f32 v[{t+2*c}:{t+2*c+1}], v[{t+2*c}:{t+2*c+1}], v[{KS+2*c}:{KS+2*c+1}]")
            if j % 2 == 1:
                p = (j % 8) // 2
                for ch in range(8):
                    e(f"v_cvt_pk_bf16_f32 v{outreg(ch)+3-p}, v{TMP+8+ch}, v{TMP+ch}")
            if j % 8 == 7:
                for ch in range(8):
                    e(f"ds_write_b128 v{2+j//8}, v[{outreg(ch)}:{outreg(ch)+3}] offset:{ch*256}")
                e("s_waitcnt lgkmcnt(0)")
        self.stamp(21)
        e("s_waitcnt vmcnt(0)")
        self.cnt_wait(250, 251)
        e(f"s_cmp_lg_u32 s{sWAVE}, 0\ns_cbranch_scc1 L_prep_noid")
        self.publish_id(250)
        e("L_prep_noid:")
        e("v_and_b32 v4, 15, v0\nv_lshrrev_b32 v5, 4, v0")
        e("v_lshlrev_b32 v6, 4, v4\nv_lshl_add_u32 v1, v5, 12, v6")
        e("v_lshl_add_u32 v6, v5, 8, v6")
        e(f"v_add_u32 v6, s{sE}, v6")
        for ch in range(8):
            e(f"v_xor_b32 v{8+ch}, {ch*16}, v6")
        for jj in range(16):
            e(f"ds_read_b128 v[{VR+4*jj}:{VR+4*jj+3}], v{8+jj//2} offset:{jj*1024}")
        e(f"s_lshl_b32 s{sC}, s{sA}, 18\ns_sub_u32 s{sD}, 15, s{sB}\ns_lshl_b32 s{sD}, s{sD}, 8")
        e(f"s_add_u32 s{sC}, s{sC}, s{sD}\ns_add_u32 s{sC}, s{sC}, {WS_UR:#x}")
        for jj in range(16):
            e(f"s_waitcnt lgkmcnt({15-jj})")
            e(f"buffer_store_dwordx4 v[{VR+4*jj}:{VR+4*jj+3}], v1, {self.R('ws')}, s{sC} offen {self.opt['uwsc'].replace('_', ' ')}")
            e(f"s_add_u32 s{sC}, s{sC}, 0x4000")
        e(f"s_lshl_b32 s{sB}, s{sB}, 4\ns_add_u32 s{sB}, s{sB}, s{sA}\ns_lshl_b32 s{sB}, s{sB}, 10\ns_add_u32 s{sB}, s{sB}, {WS_FL+FL_P:#x}")
        e("s_waitcnt vmcnt(0)")
        self.lane0_begin()
        e(f"buffer_store_dword v253, v252, {self.R('ws')}, s{sB} offen sc1")
        self.lane0_end()
        self.stamp(23)
        e("s_setprio 0")

    def c_setup(self):
        e = self
        e("v_lshlrev_b32 v1, 4, v0")
        e("v_and_b32 v16, 15, v0\nv_lshrrev_b32 v17, 4, v0")
        e("v_lshrrev_b32 v18, 2, v16\nv_and_b32 v19, 3, v0")
        e("v_lshrrev_b32 v20, 1, v16\nv_xor_b32 v20, v20, v17\nv_lshlrev_b32 v20, 4, v20")
        e("v_lshl_add_u32 v20, v16, 7, v20")
        e(f"v_add_u32 v2, {G1_SLOT}, v20\nv_xor_b32 v3, 64, v2")
        e("v_lshl_add_u32 v20, v17, 3, v18\nv_lshlrev_b32 v20, 9, v20\nv_lshl_add_u32 v20, v19, 3, v20")
        e("v_and_b32 v21, 1, v17\nv_lshl_or_b32 v21, v21, 2, v18")
        e(f"s_lshr_b32 s{sWS}, s{sW4}, 1\ns_and_b32 s{sWD}, s{sW4}, 1")
        e(f"s_lshl_b32 s{sA}, s{sWS}, 8\ns_add_u32 s{sA}, s{sA}, {G1_SLOT+16384}")
        e(f"v_add_u32 v20, s{sA}, v20")
        e(f"s_lshl_b32 s{sB}, s{sWD}, 2\nv_xor_b32 v21, s{sB}, v21")
        for t in range(4):
            e(f"v_xor_b32 v23, {t}, v21\nv_lshl_add_u32 v{4+t}, v23, 5, v20")
        self.c_setup_g2()
        e(f"s_lshl_b32 s{sFH}, s{sMI1}, 1\ns_add_u32 s{sFH}, s{sFH}, s{sKH1}\ns_lshl_b32 s{sFH}, s{sFH}, 10")
        e(f"s_mul_i32 s{sT}, s{sKH1}, 7\ns_sub_u32 s{sT}, s{sNI1}, s{sT}\ns_lshl_b32 s{sT}, s{sT}, 2")
        e(f"s_add_u32 s{sT}, s{sT}, s{sW4}\ns_lshl_b32 s{sT}, s{sT}, 2")
        e(f"s_add_u32 s{sFH}, s{sFH}, s{sT}\ns_add_u32 s{sFH}, s{sFH}, {WS_FL+FL_2:#x}")
        e(f"s_lshl_b32 s{sH}, s{sMI2}, 1\ns_add_u32 s{sH}, s{sH}, s{sKH}\ns_lshl_b32 s{sH}, s{sH}, 10\ns_add_u32 s{sH}, s{sH}, {WS_FL+FL_2:#x}")
        e(f"s_andn2_b32 s{sJ}, s{sFH}, 15\ns_cmp_ge_u32 s{sI}, 28\ns_cselect_b32 s{sJ}, s{sH}, s{sJ}")
        e(f"v_mov_b32 v20, s{sH}\nv_mov_b32 v21, s{sJ}\nv_cmp_gt_u32 vcc, 32, v0\nv_min_u32 v22, 27, v0\nv_and_b32 v23, 3, v0")
        e("v_cndmask_b32 v20, v21, v20, vcc\nv_cndmask_b32 v22, v23, v22, vcc\nv_lshl_add_u32 v14, v22, 2, v20")
        e(f"s_mul_i32 s{sD}, s{sMI1}, {112*8192}\ns_lshl_b32 s{sT}, s{sNI1}, 16\ns_add_u32 s{sD}, s{sD}, s{sT}")
        e(f"s_lshl_b32 s{sT}, s{sW4}, 14\ns_add_u32 s{sD}, s{sD}, s{sT}")
        assert WS_H == 0
        for i in range(1, 4):
            e(f"s_add_u32 s{sD+i}, s{sD}, {0x1000*i:#x}")

    def c_setup_g2(self):
        e = self
        e("v_lshrrev_b32 v22, 2, v0\nv_lshlrev_b32 v22, 8, v22\nv_lshl_add_u32 v22, v19, 3, v22")
        for t in range(4):
            e(f"v_xor_b32 v23, {t}, v21\nv_lshl_add_u32 v{10+t}, v23, 5, v22")
        e(f"s_lshl_b32 s{sC}, s{sKH}, 12\ns_lshl_b32 s{sT}, s{sWS}, 11\ns_add_u32 s{sC}, s{sC}, s{sT}\ns_add_u32 s{sC}, s{sC}, {self.HO[0]}")
        e(f"v_add_u32 v8, s{sC}, v1\nv_xor_b32 v9, 4096, v8")
        for i in range(6):
            e(f"v_add_u32 v{112+i}, {self.HO[3]-self.HO[0] if i < 2 else self.WO[3]}, v{8+i}")
        self.w2_voff(248, 20)

    def w2_voff(self, vW, t):
        e = self
        e(f"v_lshrrev_b32 v{t+2}, 4, v0\nv_and_b32 v{t}, 15, v0\nv_lshlrev_b32 v{t+1}, 1, v{t+2}\nv_xor_b32 v{t}, v{t}, v{t+1}")
        e(f"v_lshlrev_b32 v{t}, 4, v{t}\nv_lshl_add_u32 v{t}, v{t+2}, 11, v{t}\nv_xor_b32 v{t+1}, 128, v{t}")
        for j in range(4):
            e(f"v_add_u32 v{vW+j}, {j*8192 - j*1024}, v{t+(j&1)}")

    FA, FB, CACC, AD, vA, vB, vY = (32, 64), (96, 128), 160, 192, 196, 200, 201

    def l_setup0(self):
        e = self
        self.channel(sYB)
        e(f"s_lshr_b32 s{sT}, s{sYB}, 1\ns_lshl_b32 s{sT}, s{sT}, 2")
        e(f"s_load_dword s{sL}, s[{KARG['sd']}:{KARG['sd']+1}], s{sT}")

    def l_setup(self):
        e = self
        vA, vB, vY = self.vA, self.vB, self.vY
        e("v_lshlrev_b32 v1, 4, v0\nv_and_b32 v20, 31, v0\nv_lshlrev_b32 v20, 2, v20")
        e("v_and_b32 v21, 15, v0\nv_lshlrev_b32 v21, 14, v21")
        self.w2_voff(212, 2)
        e("v_and_b32 v2, 15, v0\nv_lshrrev_b32 v3, 4, v0")
        e(f"s_lshl_b32 s{sM}, s{sW4}, 14\ns_add_u32 s{sM}, s{sM}, {CV_BASE}")
        e("v_lshl_add_u32 v4, v3, 3, v2\nv_and_b32 v5, 1, v2")
        e("v_add_u32 v6, v4, v5\nv_lshlrev_b32 v6, 1, v6")
        e(f"v_xor_b32 v5, 1, v5\nv_mul_u32_u24 v5, {CV_O}, v5")
        e(f"v_add3_u32 v{vA}, v6, v5, s{sM}")
        for i in range(1, 4):
            e(f"v_add_u32 v{vA+i}, {1024*i}, v{vA}")
        e("v_lshlrev_b32 v6, 4, v3\nv_lshlrev_b32 v5, 5, v2\nv_sub_u32 v6, v6, v5")
        e(f"s_add_u32 s{sM}, s{sM}, {CV_UR + 4064 - 3584}\nv_add_u32 v{vB}, s{sM}, v6")
        e(f"v_and_b32 v{vY}, 1, v3\nv_lshlrev_b32 v{vY}, 9, v{vY}")
        e(f"v_lshrrev_b32 v5, 1, v3\nv_lshl_add_u32 v{vY}, v5, 6, v{vY}")
        e(f"v_lshrrev_b32 v5, 2, v2\nv_lshl_add_u32 v{vY}, v5, 7, v{vY}\nv_and_b32 v5, 3, v0\nv_lshl_add_u32 v{vY}, v5, 4, v{vY}")
        e("v_sub_u32 v4, 15, v4\nv_ashrrev_i32 v5, 1, v4\nv_and_b32 v4, 1, v4\nv_lshlrev_b32 v4, 4, v4")
        e(f"s_waitcnt lgkmcnt(0)\ns_and_b32 s{sT}, s{sYB}, 1\ns_lshl_b32 s{sT}, s{sT}, 4")
        e(f"s_lshr_b32 s{sM}, s{sL}, s{sT}\ns_and_b32 s{sM}, s{sM}, 0xffff")
        e(f"v_lshlrev_b32 v4, v4, s{sM}")
        for w in range(4):
            e(f"v_cmp_eq_u32 vcc, {w}, v5\ns_nop 1\nv_cndmask_b32 v{self.AD+w}, 0, v4, vcc")
        e(f"s_lshl_b32 s{sYB}, s{sYB}, 12\ns_add_u32 s{sYB}, s{sYB}, {WS_YT:#x}")
        e("v_xor_b32 v2, v2, v3\nv_lshlrev_b32 v2, 4, v2\nv_lshl_add_u32 v2, v3, 11, v2")
        for j in range(4):
            e(f"v_xor_b32 v4, {j*64}, v2\nv_add_u32 v{204+j}, {j*8192 - j*1024}, v4")
        e("v_lshrrev_b32 v4, 3, v0\nv_and_b32 v2, 7, v0\nv_xor_b32 v2, v2, v3\nv_lshlrev_b32 v2, 4, v2")
        e("v_lshl_add_u32 v2, v4, 12, v2")
        for j in range(4):
            e(f"v_add_u32 v{208+j}, {j*32768 - j*1024}, v2")
        e("v_lshrrev_b32 v202, 1, v0\nv_lshlrev_b32 v202, 13, v202\nv_and_b32 v2, 1, v0\nv_lshl_add_u32 v202, v2, 3, v202")
        e(f"s_lshl_b32 s{sM}, s{sMI2}, 1\ns_add_u32 s{sM}, s{sM}, s{sKH}\ns_and_b32 s{sT}, s{sM}, 3\ns_lshr_b32 s{sM}, s{sM}, 2")
        e(f"s_lshl_b32 s{sT}, s{sT}, 3\ns_add_u32 s{sM}, s{sM}, s{sT}\ns_add_u32 s{sM}, s{sM}, 224\ns_xor_b32 s{sT}, s{sWG}, 1")
        e(f"v_mov_b32 v2, s{sM}\nv_mov_b32 v3, s{sT}\nv_cmp_gt_u32 vcc, 32, v0\nv_and_b32 v203, 12, v20\ns_nop 0")
        e("v_cndmask_b32 v2, v3, v2, vcc\nv_lshl_add_u32 v203, v2, 10, v203")

    G1ACC = 120
    H_EARLY = [7, 6, 5, 4]
    H_LATE = [3, 2, 1, 0, 15, 14, 13, 12, 11, 10, 9, 8]

    def h_pack(self, n):
        a = self.G1ACC + 8 * n
        return [f"v_cvt_pk_bf16_f32 v{a+c}, v{a+2*c}, v{a+2*c+1}" for c in range(4)] + \
               [f"v_pk_max_i16 v{a+c}, v{a+c}, 0" for c in range(4)]

    def h_store(self, n, srd, sc):
        a = self.G1ACC + 8 * n
        return f"buffer_store_dwordx4 v[{a}:{a+3}], v1, {self.R(srd)}, s{sD+n//4} offen offset:{(n%4)*1024} {sc}"

    def g1_pairs(self, slot, bump):
        e = self
        ACC, XR, WS_, vXA, vWA = self.G1ACC, 16, (48, 80), 2, 4

        def rx(st):
            return [f"ds_read_b128 v[{XR+8*(st%4)+4*ks}:{XR+8*(st%4)+4*ks+3}], v{vXA+ks} offset:{st*2048}" for ks in range(2)]

        def rw(p):
            return [f"ds_read_b64_tr_b16 v[{WS_[p]+8*t+4*ks+2*hh}:{WS_[p]+8*t+4*ks+2*hh+1}], v{vWA+t} offset:{ks*16384+hh*2048}"
                    for t in range(4) for ks in range(2) for hh in range(2)]

        def mf(p, first):
            out = []
            for st in range(8):
                for n in range(4):
                    t = n if st % 2 == 0 else 3 - n
                    r = ACC + 8 * ((t >> 1) * 8 + st) + 4 * (t & 1)
                    for i in range(2):
                        ks = i ^ (n & 1)
                        w, x = WS_[p] + 8 * t + 4 * ks, XR + 8 * (st % 4) + 4 * ks
                        out.append(f"v_mfma_f32_16x16x32_bf16 v[{r}:{r+3}], v[{w}:{w+3}], v[{x}:{x+3}], {0 if first and i == 0 else f'v[{r}:{r+3}]'}")
            return out

        def head(n=0):
            it = [(-1, f"s_waitcnt lgkmcnt({6+n})"), (5, f"s_waitcnt lgkmcnt({4+n})")]
            for ph in range(5):
                it += [(8 * ph + i, x) for i, x in enumerate(rx(ph + 3))]
            return it + [(8 * ph - 1, "s_waitcnt lgkmcnt(4)") for ph in (2, 3, 4, 5)]

        def step(p, first=False, extra=()):
            it = head() + [(10 + i, x) for i, x in enumerate(slot)] + [(34 + i // 2, x) for i, x in enumerate(bump)]
            bs = self.opt.get("bs", 40)
            it += [(bs, "s_waitcnt lgkmcnt(0)"), (bs, "s_barrier")]
            w = rw(1 - p)
            seq = w[:2] + rx(0)[:1] + w[2:4] + rx(0)[1:] + w[4:8] + rx(1)[:1] + w[8:10] + rx(1)[1:] + w[10:]
            it += [(bs + 1 + i, x) for i, x in enumerate(seq + rx(2))]
            self.place(mf(p, first), it + list(extra))
        w = rw(0)
        for x in w[:4] + rx(0) + w[4:] + rx(1) + rx(2):
            e(x)
        step(0, True)
        e(".p2align 6")
        e("L_g1c_loop:")
        step(1)
        step(0, extra=[(18, f"s_add_u32 s{sK}, s{sK}, 1"), (19, f"s_cmp_lt_u32 s{sK}, 7")])
        e("s_cbranch_scc1 L_g1c_loop")
        order = [n for st in range(8) for n in ((st, 8 + st) if st % 2 == 0 else (8 + st, st))]
        ne, nin = self.opt.get("ne", 11), self.opt.get("nin", 10)
        it = [(-1, "ds_read_b32 v15, v15")] + head(1) + [(47, "s_waitcnt lgkmcnt(0)")]
        it += [(16, f"v_readfirstlane_b32 s{sV}, v15"), (19, f"s_cmp_eq_u32 s{sV}, 1"),
               (20, f"s_cselect_b32 s{SRD['hst']+2}, s{SRD['ws']+2}, 0")]
        if self.opt.get("ldscnt"):
            it += [(30, f"v_mov_b32 v15, {LDS_VERD+4}"), (48, "ds_add_u32 v15, v253")]
        for i, n in enumerate(order[:ne]):
            it += [(20 + 4 * i + c // 2, x) for c, x in enumerate(self.h_pack(n))]
        it += [(24 + 4 * i, self.h_store(n, "hst", self.opt["hst"].replace("_", " "))) for i, n in enumerate(order[:nin])]
        self.place(mf(1, False), it)
        return order[:ne], order[ne:], nin

    def g1_cwave(self):
        e = self
        ACC, SA, SB, vXA, vWA = self.G1ACC, 16, 64, 2, 4

        def reads(S, ks):
            w = []
            for t in range(4):
                for hh in range(2):
                    d = S + 32 + 4 * t + 2 * hh
                    w.append(f"ds_read_b64_tr_b16 v[{d}:{d+1}], v{vWA+t} offset:{ks*16384+hh*2048}")
            xs = [f"ds_read_b128 v[{S+4*st}:{S+4*st+3}], v{vXA+ks} offset:{st*2048}" for st in range(8)]
            return w[:2] + xs + w[2:]

        def mfmas(S, first=False):
            out = []
            for t in range(4):
                for i in range(8):
                    st = i if t % 2 == 0 else 7 - i
                    r = ACC + 8 * ((t >> 1) * 8 + st) + 4 * (t & 1)
                    a = f"v[{r}:{r+3}]"
                    out.append(f"v_mfma_f32_16x16x32_bf16 {a}, v[{S+32+4*t}:{S+35+4*t}], v[{S+4*st}:{S+4*st+3}], {0 if first else a}")
            return out
        slot = [f"s_add_u32 s{sA}, s{sA}, 1", f"s_cmp_eq_u32 s{sA}, 3", f"s_cselect_b32 s{sA}, 0, s{sA}",
                f"s_cselect_b32 s{sB}, {(-2*G1_SLOT) & 0xffffffff:#x}, s{sC}"]

        def half_a(first, extra):
            it = [(-1, "s_waitcnt lgkmcnt(6)")] + [(2 * i, x) for i, x in enumerate(reads(SB, 1))]
            it += [(7, "s_waitcnt lgkmcnt(4)")] + [(9 + 2 * i, x) for i, x in enumerate(slot + extra)]
            self.place(mfmas(SA, first), it)
        bump = [f"v_add_u32 v{r}, s{sB}, v{r}" for r in (vWA, vXA, vWA + 1, vWA + 2, vWA + 3, vXA + 1)]
        e(f"s_mov_b32 s{sK}, 0\ns_mov_b32 s{sA}, 1\ns_mov_b32 s{sC}, {G1_SLOT:#x}")
        e(f"v_mov_b32 v15, {LDS_VERD}")
        r = SRD["hst"]
        e(f"s_mov_b64 s[{r}:{r+1}], s[{SRD['ws']}:{SRD['ws']+1}]\ns_mov_b32 s{r+2}, 0\ns_mov_b32 s{r+3}, 0x20000")
        self.stamp(1)
        e("s_barrier")
        self.stamp(2)
        if self.opt["g1k"]:
            early, late, nin = self.g1_pairs(slot, bump)
        else:
            for x in reads(SA, 0):
                e(x)
            half_a(True, [])
            e(".p2align 6")
            e("L_g1c_loop:")
            it = [(-1, "s_waitcnt lgkmcnt(6)")] + [(i, x) for i, x in enumerate(bump)]
            it += [(7, "s_waitcnt lgkmcnt(0)"), (7, "s_barrier")] + [(8 + (3 * i) // 2, x) for i, x in enumerate(reads(SA, 0))]
            self.place(mfmas(SB), it)
            lsr = self.opt["lsr"]
            half_a(False, [f"s_add_u32 s{sK}, s{sK}, 1", f"s_cmp_lt_u32 s{sK}, {14 if lsr else 15}"])
            e("s_cbranch_scc1 L_g1c_loop")
            vd = [(0, "ds_read_b32 v15, v15"), (9, f"v_readfirstlane_b32 s{sV}, v15"), (12, f"s_cmp_eq_u32 s{sV}, 1")]
            if lsr:
                self.place(mfmas(SB), it + vd + [(13, f"s_cselect_b32 s{SRD['hst']+2}, s{SRD['ws']+2}, 0")])
                ma, mb = mfmas(SA), mfmas(SB)
                rd = reads(SB, 1)
                it = [(-1, "s_waitcnt lgkmcnt(6)")] + list(enumerate(rd[:12])) + [(7, "s_waitcnt lgkmcnt(8)")]
                it += [(15, "s_waitcnt lgkmcnt(2)"), (23, "s_waitcnt lgkmcnt(4)"), (47, "s_waitcnt lgkmcnt(0)")]
                it += [(30, f"v_mov_b32 v15, {LDS_VERD+4}"), (48, "ds_add_u32 v15, v253")]
                it += [(17 + i, x) for i, x in enumerate(rd[12:])]
                early, late = [7, 6, 5, 4, 3, 2, 1, 0], [15, 14, 13, 12, 11, 10, 9, 8]
                for i, n in enumerate(early):
                    it += [(32 + 4 * i + c // 2, x) for c, x in enumerate(self.h_pack(n))]
                nin = self.opt.get("nin", 7)
                it += [(36 + 4 * i, self.h_store(n, "hst", self.opt["hst"].replace("_", " "))) for i, n in enumerate(early[:nin])]
                self.place(ma[:16] + mb[:16] + ma[16:] + mb[16:], it)
            else:
                early, late, nin = self.H_EARLY, self.H_LATE, 0
                ev = sum((self.h_pack(n) for n in early), [])
                it = [(-1, "s_waitcnt lgkmcnt(6)"), (7, "s_waitcnt lgkmcnt(0)")] + vd + [(16 + i // 2, x) for i, x in enumerate(ev)]
                self.place(mfmas(SB), it)
        self.stamp(3)
        e("s_cbranch_scc0 L_g1c_slow")

        def finish(sc, skip):
            pend = list(early[skip:])
            for n in late:
                if pend:
                    e(self.h_store(pend.pop(0), "ws", sc))
                for x in self.h_pack(n):
                    e(x)
                pend.append(n)
            for n in pend:
                e(self.h_store(n, "ws", sc))

        def flag(sc):
            self.lane0_begin()
            e(f"buffer_store_dword v253, v252, {self.R('ws')}, s{sFH} offen {sc}")
            self.lane0_end()
        finish(self.opt["hst"].replace("_", " "), nin)
        self.stamp(4)
        n = self.g2_first(True)
        e(f"s_waitcnt vmcnt({n})")
        flag("")

        def slow():
            e("L_g1c_slow:")
            finish("sc1", 0)
            self.cnt_load(16)
            e("s_waitcnt vmcnt(0)")
            self.cnt_wait(16, 17)
            flag("sc1")
            e("L_g2_c0:")
            self.g2_first(True)
            e("s_branch L_g2_c")
        self.cold.append(slow)

    def g1_lwave(self):
        e = self
        vX, vW = 8, 12
        assert self.opt["rot1"] == 2
        e("v_lshrrev_b32 v1, 3, v0\nv_lshrrev_b32 v2, 4, v0\nv_and_b32 v3, 7, v0")
        e(f"v_xor_b32 v3, v3, v2\nv_lshlrev_b32 v3, 4, v3\nv_lshl_add_u32 v{vX}, v1, 11, v3")
        e(f"v_xor_b32 v4, 64, v{vX}")
        for j in range(1, 4):
            e(f"v_add_u32 v{vX+j}, {j*16384 - j*1024}, v{4 if j & 1 else vX}")
        e(f"s_lshl1_add_u32 s{sC}, s{sKH}, s{sC}\ns_and_b32 s{sT}, s{sNI1}, 1\ns_add_u32 s{sC}, s{sC}, s{sT}")
        e(f"s_and_b32 s{sC}, s{sC}, 3\ns_lshl_b32 s{sC}, s{sC}, 2")
        e(f"s_lshl2_add_u32 s{sA}, s{sMI1}, s{sW4}\ns_lshl_b32 s{sA}, s{sA}, 16")
        e(f"s_lshl_b32 s{sG}, s{sW4}, 12\ns_mov_b32 s{sD}, {G1_SLOT}")
        e(f"s_lshl_b32 s{sE}, s{sC}, 7\ns_add_u32 s{sE}, s{sE}, s{sA}\ns_add_u32 m0, s{sD}, s{sG}")
        e("v_lshrrev_b32 v1, 5, v0\nv_and_b32 v2, 31, v0\nv_lshlrev_b32 v3, 1, v1\nv_xor_b32 v2, v2, v3")
        e(f"v_mul_u32_u24 v1, 7168, v1\nv_lshl_add_u32 v{vW}, v2, 4, v1")
        e(f"v_xor_b32 v1, 64, v{vW}\nv_xor_b32 v2, 128, v{vW}\nv_xor_b32 v3, 64, v2")
        for j in range(1, 8):
            src = (vW, 1, 2, 3)[(j & 1) + 2 * (j >> 2)]
            e(f"v_add_u32 v{vW+j}, {2*j*7168 - (j%4)*1024}, v{src}")
        e(f"s_mul_i32 s{sB}, s{sW4}, 224\ns_add_u32 s{sB}, s{sB}, s{sNI1}\ns_lshl_b32 s{sB}, s{sB}, 9")
        e(f"s_lshl1_add_u32 s{sH}, s{sG}, 16384")
        pw = self.opt["pw"]
        NS = 12 + pw
        if pw:
            e(f"s_mul_i32 s{sPW}, s{sMI1}, {112*8192}\ns_lshl_b32 s{sT}, s{sNI1}, 16\ns_add_u32 s{sPW}, s{sPW}, s{sT}")
            e(f"s_lshl_b32 s{sT}, s{sW4}, 14\ns_add_u32 s{sPW}, s{sPW}, s{sT}\nv_lshlrev_b32 v22, 4, v0")

        def issue(extra=None):
            for j in range(4):
                e(f"buffer_load_dwordx4 v{vX+j}, {self.R('q')}, s{sE} offen offset:{j*1024} lds")
            if extra:
                extra()
            e(f"s_add_u32 m0, s{sD}, s{sH}")
            e(f"s_mul_i32 s{sF}, s{sC}, {64*7168}\ns_add_u32 s{sF}, s{sF}, s{sB}")
            for j in range(4):
                e(f"buffer_load_dwordx4 v{vW+j}, {self.R('w1')}, s{sF} offen offset:{j*1024} lds")
            e("s_add_u32 m0, m0, 0x1000")
            e(f"s_add_u32 s{sC}, s{sC}, 1\ns_and_b32 s{sC}, s{sC}, 15\ns_lshl_b32 s{sE}, s{sC}, 7\ns_add_u32 s{sE}, s{sE}, s{sA}")
            e(f"s_add_u32 s{sD}, s{sD}, {G1_SLOT}\ns_cmp_eq_u32 s{sD}, {3*G1_SLOT}\ns_cselect_b32 s{sD}, 0, s{sD}")
            e(f"s_add_u32 s{sK}, s{sK}, 1")
            if pw:
                e(f"buffer_store_dwordx4 v[{vX}:{vX+3}], v22, {self.R('ws')}, s{sPW} offen sc1\ns_add_u32 s{sPW}, s{sPW}, 0x400")
            for j in range(4, 8):
                e(f"buffer_load_dwordx4 v{vW+j}, {self.R('w1')}, s{sF} offen offset:{(j%4)*1024} lds")
            e(f"s_add_u32 m0, s{sD}, s{sG}")
        e(f"s_mov_b32 s{sK}, -2")
        self.kargs(("q", "w1"))
        self.stamp(10)
        e("L_g1l_pro:")
        issue()
        e(f"s_cmp_lt_i32 s{sK}, 0\ns_cbranch_scc1 L_g1l_pro")
        e("L_warm_begin:")
        self.l_setup0()
        self.stamp(12)
        e(f"s_waitcnt vmcnt({NS})\ns_barrier")
        self.ids2()
        self.srd("ws")
        if self.opt["prio"]:
            e(f"s_setprio {self.opt['prio']}")
        self.l_setup()
        e(f"v_mov_b32 v24, 0\nv_mov_b32 v25, 0\nv_mov_b32 v26, 0\ns_mov_b32 s{sOK}, 0\ns_mov_b32 s{sJ}, 0x3150")
        if self.opt["sent"]:
            self.poison_setup()
        e("s_branch L_g1l_issue")
        e("L_g1l_loop:")
        e(f"s_waitcnt vmcnt({NS})")
        e("L_g1l_bar:")
        e("s_barrier")
        e("L_g1l_issue:")
        issue()
        e(f"s_bitcmp1_b32 s{sJ}, s{sK}\ns_cbranch_scc1 L_g1l_event")
        e(f"s_cmp_lt_i32 s{sK}, 14\ns_cbranch_scc1 L_g1l_loop")

        def events():
            e("L_g1l_event:")
            for k in (6, 8, 12, 13):
                e(f"s_cmp_eq_u32 s{sK}, {k}\ns_cbranch_scc1 L_g1l_e{k}")
            self.cnt_load(24)
            e(f"L_g1l_eback:\ns_waitcnt vmcnt({NS+1})\ns_branch L_g1l_bar")
            e("L_g1l_e6:")
            e(f"v_readfirstlane_b32 s{sOK}, v24\ns_nop 1\ns_cmp_ge_u32 s{sOK}, 32\ns_cbranch_scc1 L_g1l_loop")
            self.cnt_load(24)
            e("s_branch L_g1l_eback")
            e("L_g1l_e8:")
            here = self.opt["sent"] == 1
            nx = "L_g1l_e8b" if here else "L_g1l_loop"
            e(f"v_readfirstlane_b32 s{sOK}, v24\ns_nop 1\ns_cmp_lt_u32 s{sOK}, 32\ns_cbranch_scc1 {nx}")
            e(f"s_cmp_lg_u32 s{sWAVE}, 4\ns_cbranch_scc1 {nx}")
            self.publish_id(27)
            if here:
                e("L_g1l_e8b:")
                for _ in range(4):
                    e(self.poison())
                e(f"s_waitcnt vmcnt({NS+4})\ns_branch L_g1l_bar")
            else:
                e("s_branch L_g1l_eback")
            e("L_g1l_e12:")
            self.id_line(sM)
            e(f"buffer_load_dword v25, v20, {self.R('ws')}, s{sM} offen sc1")
            e("s_branch L_g1l_eback")
            e("L_g1l_e13:")
            self.fp_line(sM)
            e(f"buffer_load_dword v26, v21, {self.R('ws')}, s{sM} offen sc1")
            e("s_branch L_g1l_eback")
        self.warm.append(events)
        self.cv_bases()
        self.my_id(sM)
        e(f"s_waitcnt vmcnt({NS})\nv_cmp_ne_u32 vcc, s{sM}, v25\nv_mov_b32 v2, {LDS_VERD}")
        e(f"s_cmp_ge_u32 s{sOK}, 32\ns_cselect_b32 s{sM}, {1 if self.opt['fast'] else 0}, 0")
        e(f"s_cmp_eq_u32 vcc_lo, 0\ns_cselect_b32 s{sM}, s{sM}, 0\nv_mov_b32 v27, s{sM}")
        e("v_mov_b32 v28, 0\nds_write2_b32 v2, v27, v28 offset0:0 offset1:1")
        e("v_cmp_ne_u32 vcc, 1, v26")
        e("s_waitcnt lgkmcnt(0)\ns_barrier")
        e(f"s_cmp_ge_u32 s{sOK}, 32\ns_cselect_b32 s{sK}, vcc_lo, 1\ns_cmp_lg_u32 s{sK}, 0\ns_cbranch_scc1 L_g1l_late")
        self.cv_stage_u()
        self.cv_stage_h()
        e("s_waitcnt vmcnt(12)\ns_barrier")

        def late():
            e("L_g1l_late:")
            self.cv_stage_h()
            e("s_waitcnt vmcnt(8)\ns_barrier")
            self.srd("dbg")
            self.cnt_wait(24, 25)
            e("L_cv_wait:")
            self.fp_line(sC)
            self.stamp(3)
            self.poll(5, 21, self.R("ws"), f"s{sC}", 253, 16)
            self.stamp(4)
            self.cv_stage_u()
            e("s_branch L_conv_l")
        self.warm.append(late)

    def poison_setup(self):
        e = self
        e(f"s_lshl_b32 s{sPW}, s{sWG}, 15\ns_lshl_b32 s{sT}, s{sW4}, 13\ns_add_u32 s{sPW}, s{sPW}, s{sT}\ns_add_u32 s{sPW}, s{sPW}, {WS_PX:#x}")
        e("v_mov_b32 v220, -1\nv_mov_b32 v221, -1\nv_mov_b32 v222, -1\nv_mov_b32 v223, -1")

    def poison(self):
        return f"buffer_store_dwordx4 v[220:223], v1, {self.R('ws')}, s{sPW} offen sc1\ns_add_u32 s{sPW}, s{sPW}, 0x400"

    def fp_line(self, sd):
        self(f"s_lshl_b32 s{sd}, s{sX}, 1\ns_lshr_b32 s{sT}, s{sI}, 4\ns_add_u32 s{sd}, s{sd}, s{sT}")
        self(f"s_lshl_b32 s{sd}, s{sd}, 10\ns_add_u32 s{sd}, s{sd}, {WS_FL+FL_P:#x}")

    def cv_bases(self):
        self.channel(sA)
        self(f"s_lshl_b32 s{sA}, s{sA}, 12\ns_lshl_b32 s{sB}, s{sW4}, 14\ns_add_u32 s{sB}, s{sB}, {CV_BASE}")

    def cv_stage_h(self):
        e = self
        nt = "nt" if self.opt["ntsk"] else ""
        self.srd("sk")
        e(f"s_add_u32 s{sH}, s{KARG['sk']}, s{sA}\ns_addc_u32 s{sJ}, s{KARG['sk']+1}, 0")
        e(f"s_load_dword s{sL}, s[{sH}:{sJ}], 0")
        e("v_add_u32 v2, 2, v1")
        e(f"s_add_u32 m0, s{sB}, 32\ns_nop 0")
        for j in range(4):
            e(f"buffer_load_dwordx4 v1, {self.R('sk')}, s{sA} offen offset:{j*1024} {nt} lds")
        e(f"s_add_u32 m0, s{sB}, {CV_O+32}\ns_nop 0")
        for j in range(4):
            e(f"buffer_load_dwordx4 v2, {self.R('sk')}, s{sA} offen offset:{j*1024} {nt} lds")
        e(f"v_add_u32 v3, {CV_UR+4096}, v1")
        for ln, a in ((30, 0), (31, 16), (32, CV_O), (33, CV_O + 16)):
            e(f"s_movk_i32 s{sT}, {a}\nv_writelane_b32 v3, s{sT}, {ln}")
        e(f"v_add_u32 v3, s{sB}, v3")
        e("v_mov_b32 v4, 0\nv_mov_b32 v5, 0\nv_mov_b32 v6, 0\nv_mov_b32 v7, 0")
        e(f"s_waitcnt lgkmcnt(0)\ns_lshl_b32 s{sL}, s{sL}, 16\nv_writelane_b32 v7, s{sL}, 33")
        e("s_mov_b32 exec_hi, 3")
        e("ds_write_b128 v3, v[4:7]")
        self.lane0_end()

    def cv_stage_u(self):
        e = self
        e(f"s_add_u32 m0, s{sB}, {CV_UR}\ns_add_u32 s{sT}, s{sA}, {WS_UR:#x}")
        for j in range(4):
            e(f"buffer_load_dwordx4 v1, {self.R('ws')}, s{sT} offen offset:{j*1024} {self.opt['usc'].replace('_', ' ')} lds")

    def g2_bases(self):
        e = self
        self.srd("w2")
        e(f"s_mul_i32 s{sA}, s{sMI2}, {112*8192}\ns_mul_i32 s{sT}, s{sKH}, {28*16384}\ns_add_u32 s{sA}, s{sA}, s{sT}")
        e(f"s_lshl_b32 s{sG}, s{sW4}, 12\ns_add_u32 s{sA}, s{sA}, s{sG}")
        e(f"s_mul_i32 s{sB}, s{sKH}, {1792*2048}\ns_lshl_b32 s{sT}, s{sNJ}, 8\ns_add_u32 s{sB}, s{sB}, s{sT}")
        e(f"s_lshl_b32 s{sT}, s{sW4}, 15\ns_add_u32 s{sB}, s{sB}, s{sT}")
        self.g2_order(sC)

    HO = (49152, 65536, 81920, 114688)
    WO = (0, 16384, 32768, 98304)

    def kof(self):
        return (f"s_add_u32 s{sT}, s{sC}, s{sMO}\ns_and_b32 s{sT}, s{sT}, 3\ns_andn2_b32 s{sL}, s{sC}, 3\n"
                f"s_add_u32 s{sL}, s{sL}, s{sT}\ns_add_u32 s{sL}, s{sL}, s{sPH}\n"
                f"s_sub_u32 s{sT}, s{sL}, 28\ns_cselect_b32 s{sL}, s{sL}, s{sT}\n"
                f"s_add_u32 s{sC}, s{sC}, 1\ns_cmp_eq_u32 s{sC}, 28\ns_cselect_b32 s{sC}, 0, s{sC}")

    def off_w(self):
        return f"s_lshl_b32 s{sF}, s{sL}, 17\ns_add_u32 s{sF}, s{sF}, s{sB}"

    def off_h(self):
        return f"s_lshl_b32 s{sE}, s{sL}, 14\ns_add_u32 s{sE}, s{sE}, s{sA}"

    def dma_w(self, vW):
        return [f"buffer_load_dwordx4 v{vW+j}, {self.R('w2')}, s{sF} offen offset:{j*1024} lds" for j in range(4)]

    def dma_h(self):
        return [f"buffer_load_dwordx4 v1, {self.R('ws')}, s{sE} offen offset:{j*1024} sc1 lds" for j in range(4)]

    def g2_first(self, before):
        e = self
        wl, wb4 = self.opt["wl"], self.opt["wb4"]
        sE0, sF0 = (sD, sH, sJ), (sE, sF, sK)
        if before:
            self.g2_bases()
            for st in range(3):
                e(self.kof())
                e(self.off_h().replace(f"s{sE}", f"s{sE0[st]}"))
                e(self.off_w().replace(f"s{sF}", f"s{sF0[st]}"))
        sts = [st for st in range(wl, 3) if (st < wl + wb4) == before]
        for st in sts:
            e(f"s_add_u32 m0, s{sG}, {self.WO[st]}\ns_nop 0")
            for x in self.dma_w(248):
                e(x.replace(f"s{sF} ", f"s{sF0[st]} "))
        return 4 * len(sts)

    def g2_order(self, sC):
        e = self
        r = self.opt["rot2"]
        if r >= 5:
            e(f"s_lshr_b32 s{sPH}, s{sMI2}, 2\ns_mul_i32 s{sPH}, s{sPH}, 7")
            if r == 5:
                e(f"s_lshr_b32 s{sC}, s{sNJ}, 2\ns_lshl_b32 s{sC}, s{sC}, 1\ns_add_u32 s{sMO}, s{sMI2}, s{sNJ}")
            elif r == 6:
                e(f"s_lshr_b32 s{sC}, s{sNJ}, 1\ns_lshl_b32 s{sMO}, s{sNJ}, 1\ns_add_u32 s{sMO}, s{sMO}, s{sMI2}")
            elif r == 7:
                e(f"s_mov_b32 s{sC}, 0\ns_add_u32 s{sMO}, s{sMI2}, s{sNJ}")
            elif r == 8:
                e(f"s_lshr_b32 s{sC}, s{sNJ}, 2\ns_lshl_b32 s{sC}, s{sC}, 1\ns_add_u32 s{sC}, s{sC}, s{sKH}\ns_add_u32 s{sMO}, s{sMI2}, s{sNJ}")
        elif r >= 3:
            e(f"s_and_b32 s{sC}, s{sNJ}, 3\ns_and_b32 s{sMO}, s{sMI2}, 3")
            e(f"s_lshr_b32 s{sPH}, s{sMI2}, 2\ns_mul_i32 s{sPH}, s{sPH}, 7")
            if r == 3:
                e(f"s_mul_i32 s{sT}, s{sNJ}, 7\ns_lshr_b32 s{sT}, s{sT}, 1")
            else:
                e(f"s_mov_b32 s{sT}, s{sNJ}")
            e(f"s_add_u32 s{sPH}, s{sPH}, s{sT}\ns_sub_u32 s{sPH}, s{sPH}, s{sC}")
        else:
            e(f"s_mov_b32 s{sC}, 0\ns_mov_b32 s{sMO}, 0\ns_mov_b32 s{sPH}, 0")
            if r:
                e(f"s_mul_i32 s{sPH}, s{sMI2}, 7\ns_lshr_b32 s{sPH}, s{sPH}, 2")
            if r == 1:
                e(f"s_add_u32 s{sPH}, s{sPH}, s{sNJ}")
            if r == 2:
                e(f"s_mul_i32 s{sT}, s{sNJ}, 7\ns_lshr_b32 s{sT}, s{sT}, 1\ns_add_u32 s{sPH}, s{sPH}, s{sT}")
        e(f"s_sub_u32 s{sT}, s{sPH}, 28\ns_cmp_ge_u32 s{sPH}, 28\ns_cselect_b32 s{sPH}, s{sT}, s{sPH}")

    def conv_pre(self):
        e = self
        FA, FB, ACC, AD, vA, vB, vY = self.FA, self.FB, self.CACC, self.AD, self.vA, self.vB, self.vY

        def reads(s):
            out = []
            for p in range(8):
                o = 128 * (p & 1)
                A, B = FA[s] + 4 * p, FB[s] + 4 * p
                out += [f"ds_read_b128 v[{B}:{B+3}], v{vB} offset:{512*(7-p)}",
                        f"ds_read2_b32 v[{A}:{A+1}], v{vA+p//2} offset0:{o} offset1:{o+1}",
                        f"ds_read2_b32 v[{A+2}:{A+3}], v{vA+p//2} offset0:{o+2} offset1:{o+3}"]
            return out

        def mfmas(s):
            return [f"v_mfma_f32_16x16x32_bf16 v[{ACC+4*t}:{ACC+4*t+3}], v[{FA[s]+4*p}:{FA[s]+4*p+3}], "
                    f"v[{FB[s]+4*(t-p)}:{FB[s]+4*(t-p)+3}], v[{ACC+4*t}:{ACC+4*t+3}]"
                    for t in range(8) for p in range(t + 1)]
        bump = [f"v_add_u32 v{r}, 64, v{r}" for r in (vB, vA, vA + 1, vA + 2, vA + 3)]

        def fin(t):
            a, d = ACC + 4 * t, FA[0] + 4 * (t // 2) + 2 * (t % 2)
            return [f"v_cvt_pk_bf16_f32 v{d}, v{a}, v{a+1}", f"v_cvt_pk_bf16_f32 v{d+1}, v{a+2}, v{a+3}"]

        def out(tp):
            d = FA[0] + 4 * tp
            return [f"v_permlane16_swap_b32 v{d}, v{d+2}", f"v_permlane16_swap_b32 v{d+1}, v{d+3}",
                    f"buffer_store_dwordx4 v[{d}:{d+3}], v{vY}, {self.R('ws')}, s{sYB} offen offset:{tp*1024} {self.opt['ysc'].replace('_', ' ')}"]

        def round_(r, rd=True):
            s = r & 1
            if r < 7 and rd:
                rs = [(5 + (5 * i) // 4, x) for i, x in enumerate(reads(1 - s))]
                n14 = sum(sl <= 14 for sl, _ in rs)
                it = list(enumerate(bump)) + rs + [(14, f"s_waitcnt lgkmcnt({n14})"), (35, "s_waitcnt lgkmcnt(9)")]
            else:
                it = [(4, "s_waitcnt lgkmcnt(0)")]
            return [[m] + [x for sl, x in it if sl == i] for i, m in enumerate(mfmas(s))]
        r0 = reads(0)
        for x in r0[0::3] + [y for i, y in enumerate(r0) if i % 3]:
            e(x)
        e("s_waitcnt lgkmcnt(15)")
        for t in range(8):
            e(f"v_mfma_f32_16x16x32_bf16 v[{ACC+4*t}:{ACC+4*t+3}], v[{AD}:{AD+3}], v[{FB[0]+4*t}:{FB[0]+4*t+3}], 0")
        e("s_waitcnt lgkmcnt(0)")
        npre, nmix = self.opt["npre"], self.opt["nmix"]
        assert npre in (6, 7, 8)
        e(f"s_mov_b32 s{sK}, 0")
        e("L_cv_loop:")
        g = round_(0) + round_(1)
        g[-3].append(f"s_add_u32 s{sK}, s{sK}, 1")
        g[-2].append(f"s_cmp_lt_u32 s{sK}, 3")
        for x in sum(g, []):
            e(x)
        e("s_cbranch_scc1 L_cv_loop")
        pre = []
        p = lambda s_: pre.extend(x.strip() for x in s_.split("\n"))
        p(self.kof())
        p(self.off_h())
        p(f"s_lshl_b32 s{sJ}, s{sNJ}, 10\ns_add_u32 s{sJ}, s{sJ}, {WS_FL+FL_Y:#x}")
        p(f"s_lshl_b32 s{sD}, s{sMI2}, 1\ns_add_u32 s{sD}, s{sD}, s{sKH}\ns_mov_b32 s{sH}, {WS_FL+FL_Y:#x}")
        if npre == 6:
            for x in bump + reads(1) + pre:
                e(x)
        else:
            g = round_(6)
            for i, x in enumerate(pre):
                g[i].append(x)
            for x in sum(g + (round_(7) if npre == 8 else []), []):
                e(x)
        groups = sum((round_(r, False) for r in range(npre, 8)), [])
        tail = ["s_nop 7"] + sum((fin(t) for t in range(8)), []) + ["s_nop 1"] + sum((out(tp) for tp in range(4)), [])
        return groups, tail

    def g2_lwave(self):
        e = self
        FA, FB, ACC, AD, vA, vB, vY = self.FA, self.FB, self.CACC, self.AD, self.vA, self.vB, self.vY
        vW = 212
        self.g2_bases()
        wl = self.opt["wl"]
        for st in range(3):
            e(self.kof())
            if st < wl:
                e(f"s_add_u32 m0, s{sG}, {self.WO[st]}")
                e(self.off_w())
                for x in self.dma_w(vW):
                    e(x)
        e(f"s_setprio 0\ns_waitcnt vmcnt({4*wl}) lgkmcnt(0)")
        self.stamp(5)

        groups, tail = self.conv_pre()
        nmix = self.opt['nmix']
        ypre = self.opt["ypre"] and not groups
        if ypre:
            for x in [x for x in tail if "store" not in x] + [x for x in tail if "store" in x]:
                e(x)
        e(f"s_setprio {self.opt['prio']}\ns_waitcnt lgkmcnt(0)")
        self.stamp(9)
        ops = sum(([st] * 4 for st in range(wl)), [])
        ops += [None] * (4 if ypre else 0)

        def bar(*need):
            n = min(ops[::-1].index(x) for x in need if x in ops) if any(x in ops for x in need) else 63
            e(f"s_waitcnt vmcnt({min(n, 63)})\ns_barrier")

        def flag_loads():
            e(f"buffer_load_dword v5, v203, {self.R('ws')}, s{sH} offen sc1")
            e(f"buffer_load_dwordx2 v[6:7], v202, {self.R('ws')}, s{sJ} offen sc1")
        ydone = None
        for k in range(25):
            st = k + 3
            e(f"s_add_u32 m0, s{sG}, {self.HO[st % 4]}")
            bar(k)
            if k == 0:
                self.stamp(8)
            take = groups[(len(groups) * k) // nmix:(len(groups) * (k + 1)) // nmix] if k < nmix else []
            if k == (nmix if groups else 0):
                take = [tail[:9], tail[9:18], tail[18:21], tail[21:24], tail[24:27], tail[27:], []]
                if self.opt.get("ybatch", 1):
                    sw = [x for x in tail[18:] if "store" not in x]
                    take = [tail[:9], tail[9:18], sw, [x for x in tail[18:] if "store" in x], [], [], []]
                    if self.opt.get("abl") == 9:
                        take[3] = []
                    if self.opt["sent"] == 2:
                        take[3] += [self.poison() for _ in range(4)]
                if ypre:
                    take = []
                ydone = k
            dm = self.dma_h() + [f"s_add_u32 m0, s{sG}, {self.WO[st % 4]}\n" + self.off_w() + "\n" + self.kof() + "\n" + self.off_h()
                                 + "\n" + self.dma_w(vW)[0]] + self.dma_w(vW)[1:]
            for i, d in enumerate(dm):
                e(d)
                ops.append(st)
                if i < 7:
                    for g in take[(len(take) * i) // 7:(len(take) * (i + 1)) // 7]:
                        for x in g:
                            e(x)
                            if "buffer_store" in x:
                                ops.append(None)
                if i == 3 and ydone is not None and k == ydone + 3:
                    e(f"s_lshl_b32 s{sT}, s{sWG}, 8\ns_add_u32 s{sT}, s{sT}, s{sW4}\ns_lshl_b32 s{sT}, s{sT}, 2\ns_add_u32 s{sT}, s{sT}, {WS_FL+FL_Y:#x}")
                    self.lane0_begin()
                    e(f"buffer_store_dword v253, v252, {self.R('ws')}, s{sT} offen sc1")
                    self.lane0_end()
                    ops.append(None)
            if k == self.opt["fk"]:
                flag_loads()
                ops.extend(["f"] * 2)
        assert ydone + 3 < self.opt["fk"]

        def yslow():
            e("L_g2l_yslow:")
            e(f"s_add_u32 s{sK}, s{sK}, 1\ns_cmp_ge_u32 s{sK}, {SPIN_MAX}\ns_cbranch_scc1 L_g2l_yok")
            e(f"s_sleep {self.opt['sleep']}")
            flag_loads()
            e("s_waitcnt vmcnt(0)\ns_branch L_g2l_ycheck")
        self.cold.append(yslow)
        e(f"s_lshl_b32 s{sF}, s{sD}, 17\ns_lshl_b32 s{sT}, s{sW4}, 15\ns_add_u32 s{sF}, s{sF}, s{sT}")
        e(f"s_lshl_b32 s{sT}, s{sNJ}, 8\ns_add_u32 s{sF}, s{sF}, s{sT}")
        e(f"s_add_u32 m0, s{sG}, {EP_Q}\ns_mov_b32 s{sK}, 0")
        late = self.opt["fk"] > 22
        bar(25) if late else bar(25, "f")
        for j in range(4):
            e(f"buffer_load_dwordx4 v{204+j}, {self.R('q')}, s{sF} offen offset:{j*1024} lds")
        ops.extend([None] * 4)
        e(f"s_lshl_b32 s{sE}, s{sD}, 7\ns_lshl_b32 s{sT}, s{sNJ}, 19\ns_add_u32 s{sE}, s{sE}, s{sT}")
        e(f"s_lshl_b32 s{sT}, s{sW4}, 17\ns_add_u32 s{sE}, s{sE}, s{sT}\ns_add_u32 s{sE}, s{sE}, {WS_YT:#x}")
        e(f"s_lshl_b32 s{sF}, s{sD}, 9\ns_add_u32 s{sF}, s{sF}, {WS_G:#x}")
        if late:
            bar(26, "f")
        e("L_g2l_ycheck:")
        e("v_and_b32 v9, v5, v6\nv_and_b32 v9, v9, v7\nv_cmp_ne_u32 vcc, 1, v9\ns_nop 0")
        e("s_cmp_eq_u64 vcc, 0\ns_cbranch_scc0 L_g2l_yslow")
        e("L_g2l_yok:")
        e(f"s_add_u32 m0, s{sG}, {EP_Y}\ns_nop 0")
        for j in range(4):
            e(f"buffer_load_dwordx4 v{208+j}, {self.R('ws')}, s{sE} offen offset:{j*1024} sc1 lds")
        e(f"s_add_u32 m0, s{sG}, {EP_G}\ns_nop 0")
        e(f"buffer_load_dwordx4 v1, {self.R('ws')}, s{sF} offen sc1 lds")
        ops.extend([None] * 5)
        if not late:
            bar(26)
        bar(27)
        e("s_waitcnt vmcnt(0)")
        self.stamp(11)
        e("s_barrier")

    def g2_cwave(self):
        e = self
        ACC, SS = 184, (16, 120)
        vHK, vWA = 8, 10

        def reads(s, slot):
            S = SS[s]
            o = oh = (slot % 3) * 16384
            vh, vw = (112, 114) if slot == 3 else (vHK, vWA)
            w = []
            for t in range(4):
                for ks in range(2):
                    for hh in range(2):
                        d = S + 32 + 8 * t + 4 * ks + 2 * hh
                        w.append(f"ds_read_b64_tr_b16 v[{d}:{d+1}], v{vw+t} offset:{o+ks*8192+hh*4096}")
            h = [f"ds_read_b128 v[{S+16*ks+4*j}:{S+16*ks+4*j+3}], v{vh+(j>>1)} offset:{oh+ks*8192+(j&1)*1024}"
                 for j in range(4) for ks in range(2)]
            out = []
            for i in range(8):
                out += [w[i], h[i]]
            return out + w[8:]

        def acc(t, j):
            return ACC + 4 * ((j >> 1) * 8 + t * 2 + (j & 1))

        def mfmas(s, order=None, first=False):
            S = SS[s]
            order = order or [(t, j if t % 2 == 0 else 3 - j) for t in range(4) for j in range(4)]
            out = []
            for n, (t, j) in enumerate(order):
                a = f"v[{acc(t,j)}:{acc(t,j)+3}]"
                for i in range(2):
                    ks = i ^ (n & self.opt["zig"])
                    out.append(f"v_mfma_f32_16x16x32_bf16 {a}, v[{S+32+8*t+4*ks}:{S+35+8*t+4*ks}], "
                               f"v[{S+16*ks+4*j}:{S+16*ks+4*j+3}], {0 if first and i == 0 else a}")
            return out

        def step(k, pre=(), vm=0):
            it = [(-1, "s_waitcnt lgkmcnt(8)")] + list(enumerate(pre))
            it += [(6, f"s_waitcnt vmcnt({vm}) lgkmcnt(0)"), (6, "s_barrier")]
            it += [(7 + i, x) for i, x in enumerate(reads((k + 1) & 1, (k + 1) % 4))]
            self.place(mfmas(k & 1, first=(k == 0)), it)
        self.stamp(8)
        self.g2_first(False)
        e(f"s_mov_b32 s{sN}, 0\nL_hpoll:")
        e(f"buffer_load_dword v16, v14, {self.R('ws')}, 0 offen sc1\ns_waitcnt vmcnt(0)")
        e(f"v_cmp_ne_u32 vcc, 1, v16\ns_add_u32 s{sN}, s{sN}, 1\ns_cmp_eq_u64 vcc, 0\ns_cbranch_scc1 L_hpolldone")
        e(f"s_sleep {self.opt['hsleep']}\ns_cmp_lt_u32 s{sN}, {SPIN_MAX}\ns_cbranch_scc1 L_hpoll\nL_hpolldone:")
        self.stamp(9)
        for st in range(3):
            e(f"s_add_u32 m0, s{sG}, {self.HO[st]}\ns_nop 0")
            for x in self.dma_h():
                e(x.replace(f"s{sE} ", f"s{(sD, sH, sJ)[st]} "))
        e("s_waitcnt vmcnt(8)")
        self.stamp(11)
        e("s_barrier")
        self.stamp(12)
        for x in reads(0, 0):
            e(x)
        step(0, [f"s_mov_b32 s{sK}, 0"], vm=4)
        e("s_branch L_g2c_entry")
        e(".p2align 6")
        e("L_g2c_loop:")
        step(3)
        step(4)
        e("L_g2c_entry:")
        step(5)
        step(6, [f"s_add_u32 s{sK}, s{sK}, 1", f"s_cmp_lt_u32 s{sK}, 7"])
        e("s_cbranch_scc1 L_g2c_loop")
        pre = []
        p = lambda s_: pre.extend(x.strip() for x in s_.split("\n"))
        QA, YA, OA, RA, GA, GT = 80, 84, 86, 90, 91, 92
        i_, g_, t0, t1, t2 = 96, 97, 98, 99, 100
        p(f"s_lshl_b32 s{sC}, s{sWG}, 15\ns_lshl_b32 s{sT}, s{sW4}, 13\ns_add_u32 s{sC}, s{sC}, s{sT}")
        p(f"s_add_u32 s{sC}, s{sC}, {WS_PX:#x}\ns_add_u32 s{sD}, s{sC}, 0x1000")
        p(f"s_lshl_b32 s{sE}, s{sMI2}, 2\ns_lshl_b32 s{sT}, s{sKH}, 1\ns_add_u32 s{sE}, s{sE}, s{sT}\ns_add_u32 s{sE}, s{sE}, s{sWS}")
        p(f"s_lshl_b32 s{sG}, s{sWS}, 8\ns_add_u32 s{sG}, s{sG}, {EP_G}")
        p(f"v_and_b32 v{i_}, 15, v0\nv_lshrrev_b32 v{g_}, 4, v0\nv_lshl_add_u32 v101, v{i_}, 3, s{sG}")
        p(f"s_lshl_b32 s{sT}, s{sWD}, 3\nv_lshrrev_b32 v{t0}, 1, v{g_}\nv_or_b32 v{t0}, s{sT}, v{t0}\nv_xor_b32 v{t0}, v{t0}, v{i_}")
        p(f"v_and_b32 v{t1}, 1, v{g_}\nv_lshlrev_b32 v{t1}, 3, v{t1}\nv_lshl_add_u32 v{t1}, v{i_}, 8, v{t1}")
        p(f"s_lshl_b32 s{sT}, s{sWS}, 13\ns_add_u32 s{sT}, s{sT}, {EP_Q}\nv_add_u32 v{t1}, s{sT}, v{t1}")
        for t in range(4):
            p(f"v_xor_b32 v{t2}, {2*t}, v{t0}\nv_lshl_add_u32 v{QA+t}, v{t2}, 4, v{t1}")
        p(f"v_lshrrev_b32 v{t0}, 2, v0\nv_bfe_u32 v{t1}, v0, 3, 2")
        p(f"s_lshl_b32 s{sT}, s{sWS}, 1\nv_and_b32 v{t2}, 2, v0\nv_lshl_or_b32 v{t2}, v{t2}, 1, s{sT}")
        p(f"v_xor_b32 v{t1}, v{t1}, v{t2}\nv_and_b32 v{t2}, 1, v0\nv_lshlrev_b32 v{t2}, 3, v{t2}\nv_lshl_add_u32 v{t2}, v{t0}, 7, v{t2}")
        p(f"s_lshl_b32 s{sT}, s{sWD}, 13\ns_add_u32 s{sT}, s{sT}, {EP_Y}\nv_add_u32 v{t2}, s{sT}, v{t2}")
        p(f"v_lshl_add_u32 v{YA}, v{t1}, 4, v{t2}\nv_xor_b32 v{YA+1}, 16, v{YA}")
        send_first = [(t, j) for t in range(4) for j in (2, 3)] + [(t, j) for t in range(4) for j in (0, 1)]
        sends = [f"buffer_store_dwordx4 v[{ACC+32+4*n}:{ACC+35+4*n}], v1, {self.R('ws')}, s{sC if n < 4 else sD} offen offset:{(n%4)*1024} sc1"
                 for n in range(8)]
        it = [(-1, "s_waitcnt lgkmcnt(8)"), (3, "s_waitcnt lgkmcnt(0)")]
        xbf = self.opt["xbf"]
        if xbf:
            npre = 20
            it += [(i // 2, x) for i, x in enumerate(pre[:npre])]
            for t in range(4):
                a = ACC + 32 + 8 * t
                it += [(10 + 4 * t + c // 2, f"v_cvt_pk_bf16_f32 v{a+c}, v{a+2*c}, v{a+2*c+1}") for c in range(4)]
                it += [(12 + 4 * t, f"buffer_store_dwordx4 v[{a}:{a+3}], v1, {self.R('ws')}, s{sC} offen offset:{t*1024} {self.opt['psc'].replace('_', ' ')}")]
            free = [13, 13, 17, 17, 21, 21] + [25 + i // 2 for i in range(14)]
            it += list(zip(free, pre[npre:npre+len(free)]))
            pre = [None] * 8 + pre
        else:
            it += [(i // 2, x) for i, x in enumerate(pre[:48])] + [(24 + i, x) for i, x in enumerate(sends)]
        self.place(mfmas(1, send_first), it)
        sent = self.opt["sent"]
        XR = 64

        def xloads():
            for n in range(4):
                e(f"buffer_load_dwordx4 v[{XR+4*n}:{XR+4*n+3}], v1, {self.R('ws')}, s{sD} offen offset:{n*1024} sc1")
        if sent:
            e(f"s_xor_b32 s{sD}, s{sC}, 0x8000")
            xloads()
        for x in pre[48:]:
            e(x)
        self.stamp(13)
        e("s_barrier")
        QR, YR, PR = 16, 32, 48
        for j in range(2):
            e(f"ds_read_b64 v[{GT+2*j}:{GT+1+2*j}], v101 offset:{128*j}")
        for t in range(4):
            for j in range(2):
                n = 2 * t + j
                e(f"ds_read_b64 v[{QR+2*n}:{QR+2*n+1}], v{QA+t} offset:{j*4096}")
                e(f"ds_read_b64_tr_b16 v[{YR+2*n}:{YR+2*n+1}], v{YA+j} offset:{t*2048}")
        self.srd("out")
        e(f"s_lshl_b32 s{sF}, s{sWG}, 10\ns_lshl_b32 s{sT}, s{sW4}, 7\ns_add_u32 s{sF}, s{sF}, s{sT}\ns_add_u32 s{sF}, s{sF}, {WS_FL+FL_X:#x}")
        e(f"v_lshrrev_b32 v{t0}, 1, v{g_}\nv_and_b32 v{t1}, 7, v{i_}\nv_xor_b32 v{t0}, v{t0}, v{t1}")
        e(f"v_and_b32 v{t1}, 1, v{g_}\nv_lshlrev_b32 v{t1}, 3, v{t1}\nv_lshl_add_u32 v{t1}, v{i_}, 7, v{t1}")
        e(f"s_lshl_b32 s{sT}, s{sW4}, 12\nv_add_u32 v{t1}, s{sT}, v{t1}")
        for t in range(4):
            e(f"v_xor_b32 v{t2}, {2*t}, v{t0}\nv_lshl_add_u32 v{OA+t}, v{t2}, 4, v{t1}")
        e(f"v_lshrrev_b32 v{t0}, 3, v0\nv_and_b32 v{t1}, 7, v0\nv_xor_b32 v{t2}, v{t0}, v{t1}\nv_lshlrev_b32 v{t2}, 4, v{t2}")
        e(f"v_lshl_add_u32 v{t2}, v{t0}, 7, v{t2}\nv_add_u32 v{RA}, s{sT}, v{t2}")
        e(f"v_lshlrev_b32 v{t1}, 4, v{t1}\nv_lshl_add_u32 v{GA}, v{t0}, 11, v{t1}")
        e(f"s_lshl_b32 s{sE}, s{sE}, 16\ns_lshl_b32 s{sT}, s{sNJ}, 8\ns_add_u32 s{sE}, s{sE}, s{sT}")
        e(f"s_lshl_b32 s{sT}, s{sWD}, 7\ns_add_u32 s{sE}, s{sE}, s{sT}")
        e("s_waitcnt lgkmcnt(0)")
        assert xbf and not sent
        OL = 102
        xs = self.opt["xs"]
        for n in range(9):
            if n == xs:
                self.stamp(14)
                e("s_waitcnt vmcnt(0)")
                self.lane0_begin()
                e(f"buffer_store_dword v253, v252, {self.R('ws')}, s{sF} offen sc1")
                self.lane0_end()
                self.stamp(15)
                e(f"s_xor_b32 s{sF}, s{sF}, 1024\ns_xor_b32 s{sD}, s{sC}, 0x8000")
                e(f"buffer_load_dword v108, v252, {self.R('ws')}, s{sF} offen sc1")
            if n == 8:
                break
            j = n & 1
            a = ACC + 4 * n
            for h in range(2):
                e(f"v_lshlrev_b32 v104, 16, v{QR+2*n+h}\nv_and_b32 v105, 0xffff0000, v{QR+2*n+h}")
                e(f"v_lshlrev_b32 v106, 16, v{YR+2*n+h}\nv_and_b32 v107, 0xffff0000, v{YR+2*n+h}")
                e("v_pk_mul_f32 v[104:105], v[104:105], v[106:107]")
                e(f"v_pk_mul_f32 v[104:105], v[104:105], v[{GT+2*j}:{GT+1+2*j}] op_sel_hi:[1,0]")
                e(f"v_pk_fma_f32 v[{a+2*h}:{a+2*h+1}], v[{a+2*h}:{a+2*h+1}], v[{GT+2*j}:{GT+1+2*j}], v[104:105] op_sel:[0,1,0] op_sel_hi:[1,1,1]")
        e(f"v_lshrrev_b32 v{OL}, 16, v{GT+1}\nv_lshrrev_b32 v{OL+1}, 16, v{GT+3}\ns_mov_b32 s{sN}, 0")
        e("L_xchk:")
        e(f"s_waitcnt vmcnt(0)\nv_readfirstlane_b32 s{sM}, v108\ns_add_u32 s{sN}, s{sN}, 1")
        e(f"s_cmp_eq_u32 s{sM}, 1\ns_cbranch_scc1 L_xok\ns_cmp_ge_u32 s{sN}, {SPIN_MAX}\ns_cbranch_scc1 L_xok")
        if self.opt["xsleep"]:
            e(f"s_sleep {self.opt['xsleep']}")
        e(f"buffer_load_dword v108, v252, {self.R('ws')}, s{sF} offen sc1\ns_branch L_xchk")
        e("L_xok:")
        self.stamp(16)
        xloads()
        for t in range(4):
            e(f"s_waitcnt vmcnt({3-t})")
            for j in range(2):
                a = ACC + 4 * (2 * t + j)
                for h in range(2):
                    x = XR + 4 * t + 2 * j + h
                    e(f"v_dot2c_f32_bf16 v{a+2*h}, v{x}, v{OL+j}\nv_dot2c_f32_bf16 v{a+2*h+1}, v{x}, v{GT+2*j+1}")
            for j in range(2):
                a, d = ACC + 4 * (2 * t + j), YR + 4 * t + 2 * j
                e(f"v_cvt_pk_bf16_f32 v{d}, v{a}, v{a+1}\nv_cvt_pk_bf16_f32 v{d+1}, v{a+2}, v{a+3}")
                e(f"ds_write_b64 v{OA+t}, v[{d}:{d+1}] offset:{j*2048}")
        for n in range(4):
            e(f"ds_read_b128 v[{QR+4*n}:{QR+4*n+3}], v{RA} offset:{n*1024}")
        self.stamp(17)
        for n in range(4):
            e(f"s_waitcnt lgkmcnt({3-n})")
            e(f"buffer_store_dwordx4 v[{QR+4*n}:{QR+4*n+3}], v{GA}, {self.R('out')}, s{sE} offen {self.opt.get('outsc', '')}")
            e(f"s_add_u32 s{sE}, s{sE}, 0x4000")
        self.stamp(18)

    def build(self):
        e = self
        self.cold = []
        self.warm = []
        hdr = open(f"cdna_kernels/{NAME}.s.ref").read().split("; Override launch")[0]
        head = hdr + f"; @launch grid=(256,1,1) block=(512,1,1) lds={LDS_BYTES}\n"
        head += '.amdgcn_target "amdgcn-amd-amdhsa--gfx950"\n.text\n'
        head += f".globl {NAME}_kernel\n.p2align 8\n.type {NAME}_kernel,@function\n{NAME}_kernel:\n"
        self.prologue()
        e("L_lwave:")
        e(f"s_cmp_ge_u32 s{sI}, 28\ns_cbranch_scc1 L_prep")
        self.g1_lwave()
        e("L_conv_l:")
        self.g2_lwave()
        e("s_branch L_fin")
        e("L_cwave:")
        e(f"s_cmp_ge_u32 s{sI}, 28\ns_cbranch_scc1 L_prep")
        self.ids2()
        self.kargs()
        e("L_csetup:")
        if self.opt["hop"]:
            e("s_waitcnt vmcnt(0)\ns_mov_b64 exec, 0")
            for w in range(3):
                e(f"s_cmp_eq_u32 s{sWAVE}, {w}\ns_cbranch_scc1 L_pad{w}")
            e("s_branch L_pad3")
            e("L_hopdone:\ns_mov_b64 exec, -1")
        self.c_setup()
        e(f"s_cmp_ge_u32 s{sI}, 28\ns_cbranch_scc1 L_help_c")
        self.g1_cwave()
        e("L_g2_c:")
        self.g2_cwave()
        e("s_branch L_fin")
        for f in self.warm:
            f()
        e("L_warm_end:")
        for f in self.cold:
            f()
        e("L_prep:")
        self.ids2()
        self.kargs()
        self.stamp(1)
        if self.opt["tlb"]:
            self.tlb_warm()
        self.prep()
        e(f"s_cmp_lt_u32 s{sWAVE}, 4\ns_cbranch_scc1 L_csetup")
        e("s_barrier")
        self.stamp(2)
        if self.opt["prio"]:
            e(f"s_setprio {self.opt['prio']}")
        self.l_setup0()
        self.l_setup()
        if self.opt["sent"]:
            self.poison_setup()
            for _ in range(4 if self.opt["sent"] == 1 else 0):
                e(self.poison())
        self.cv_bases()
        self.cv_stage_h()
        e("s_branch L_cv_wait")
        e("L_help_c:")
        e("s_barrier")
        self.stamp(2)
        self.gate()
        self.stamp(22)
        e("s_branch L_g2_c0")
        e("L_fin:")
        if self.opt.get("fixspan"):
            e("L_fix:\ns_sleep 4\ns_memrealtime s[96:97]\ns_waitcnt lgkmcnt(0)")
            e(f"s_sub_u32 s96, s96, s100\ns_cmp_lt_u32 s96, {self.opt['fixspan']*100}\ns_cbranch_scc1 L_fix")
        if self.prof:
            self.stamp_cyc(61)
            self.stamp(62)
            e(f"s_getreg_b32 s{sT}, hwreg(HW_REG_XCC_ID)\nv_writelane_b32 v{vST}, s{sT}, 63")
            e(f"s_lshl_b32 s{sA}, s{sWG}, 3\ns_add_u32 s{sA}, s{sA}, s{sWAVE}\ns_lshl_b32 s{sA}, s{sA}, 8")
            e(f"s_add_u32 s{sA}, s{sA}, {WS_ST:#x}\nv_lshlrev_b32 v1, 2, v0")
            e(f"buffer_store_dword v{vST}, v1, {self.R('ws')}, s{sA} offen")
            e(f"s_add_u32 s{sA}, s{sA}, 0x80000")
            e(f"buffer_store_dword v{vST-1}, v1, {self.R('ws')}, s{sA} offen")
        e("L_end:\ns_endpgm")
        tail = f""".section .rodata,"a"
.p2align 6
.amdhsa_kernel {NAME}_kernel
  .amdhsa_next_free_vgpr 256
  .amdhsa_next_free_sgpr 102
  .amdhsa_accum_offset 256
  .amdhsa_group_segment_fixed_size 0
  .amdhsa_kernarg_size 104
  .amdhsa_user_sgpr_count 2
  .amdhsa_user_sgpr_kernarg_segment_ptr 1
  .amdhsa_system_sgpr_workgroup_id_x 1
  .amdhsa_float_denorm_mode_32 3
.end_amdhsa_kernel
"""
        if self.opt["hop"]:
            self.L = add_pads(self.L)
        return head + "\n".join(self.L) + "\n" + tail


def main(cls):
    opt = {}
    out = f"cdna_kernels/{NAME}.s"
    prof = False
    for a in sys.argv[1:]:
        if a == "prof":
            prof = True
        elif a.startswith("out="):
            out = a[4:]
        else:
            k, v = a.split("=")
            opt[k] = int(v) if v.lstrip("-").isdigit() else v
    open(out, "w").write(cls(prof=prof, **opt).build())
    print("wrote", out)


if __name__ == "__main__":
    main(Gen)
```

```python
import sys
import gen as G
from gen import *

WS_PX4 = 0x2200000
REL = (1, 9, 8)
EP_G4 = 98304
QA, YA, GL, OA, RA, GA, XA = 112, 114, 118, 248, 250, 251, 119


class Gen4(Gen):
    def __init__(self, prof=False, **opt):
        o = dict(npre=8, wl=0, w1pos=1, fk=8, rot2=1, ldscnt=1, two=0)
        o.update(opt)
        super().__init__(prof, **o)

    def w2_voff(self, vW, t):
        e = self
        e(f"v_lshrrev_b32 v{t}, 5, v0\nv_and_b32 v{t+1}, 31, v0\nv_lshlrev_b32 v{t+2}, 1, v{t}\nv_xor_b32 v{t+1}, v{t+1}, v{t+2}")
        e(f"v_lshlrev_b32 v{t+1}, 4, v{t+1}\nv_lshl_add_u32 v{t+1}, v{t}, 11, v{t+1}")
        for j in range(4):
            e(f"v_xor_b32 v{t}, {j*64}, v{t+1}\nv_add_u32 v{vW+j}, {j*4096 - j*1024}, v{t}\nv_add_u32 v{vW+4+j}, 16384, v{vW+j}")

    def c_setup_g2(self):
        e = self
        e(f"s_lshl_b32 s{sC}, s{sKH}, 12\nv_add_u32 v8, s{sC}, v1\nv_xor_b32 v9, 4096, v8")
        e("v_lshrrev_b32 v22, 2, v0\nv_and_b32 v21, 7, v22\nv_lshlrev_b32 v22, 9, v22\nv_lshl_add_u32 v22, v19, 3, v22")
        e(f"s_and_b32 s{sT}, s{sNJ}, 1\ns_lshl_b32 s{sT}, s{sT}, 8\ns_add_u32 s{sT}, s{sT}, 16384\nv_add_u32 v22, s{sT}, v22")
        e(f"s_lshl_b32 s{sT}, s{sW4}, 1\nv_xor_b32 v21, s{sT}, v21")
        e("v_lshl_add_u32 v10, v21, 5, v22\nv_xor_b32 v11, 32, v10\nv_xor_b32 v12, 256, v10\nv_xor_b32 v13, 256, v11")
        e(f"s_lshl_b32 s{sT}, s{sW4}, 2\nv_lshrrev_b32 v20, 1, v17\nv_or_b32 v21, s{sT}, v20\nv_xor_b32 v21, v21, v16")
        e("v_and_b32 v22, 1, v17\nv_lshlrev_b32 v22, 3, v22\nv_lshl_add_u32 v23, v16, 8, v22")
        e(f"v_lshl_add_u32 v23, v21, 4, v23\nv_add_u32 v{QA}, {EP_Q}, v23\nv_xor_b32 v{QA+1}, 32, v{QA}")
        e("v_bfe_u32 v21, v16, 1, 2\nv_xor_b32 v21, v21, v20\nv_lshl_add_u32 v23, v16, 6, v22\nv_lshl_add_u32 v23, v21, 4, v23")
        e(f"s_lshl_b32 s{sT}, s{sW4}, 12\nv_add_u32 v{OA}, s{sT}, v23\nv_xor_b32 v{OA+1}, 32, v{OA}")
        e(f"v_bfe_u32 v21, v0, 3, 2\nv_lshlrev_b32 v20, 4, v21\nv_xor_b32 v20, v20, v1\nv_add_u32 v{RA}, s{sT}, v20")
        e(f"v_lshrrev_b32 v20, 2, v0\nv_lshlrev_b32 v23, 4, v19\nv_lshl_add_u32 v{GA}, v20, 11, v23")
        e("v_and_b32 v23, 2, v0\nv_lshlrev_b32 v23, 1, v23\nv_xor_b32 v21, v21, v23")
        e("v_and_b32 v23, 1, v0\nv_lshlrev_b32 v23, 3, v23\nv_lshl_add_u32 v23, v20, 7, v23\nv_lshl_add_u32 v23, v21, 4, v23")
        e(f"s_add_u32 s{sT}, s{sT}, {EP_Y}\nv_add_u32 v{YA}, s{sT}, v23")
        for st in range(1, 4):
            e(f"v_xor_b32 v{YA+st}, {16*st}, v{YA}")
        e(f"v_lshlrev_b32 v20, 3, v16\nv_add_u32 v{GL}, {EP_G4}, v20")
        e(f"s_xor_b32 s{sT}, s{sWG}, {REL[0]}\nv_mov_b32 v{XA}, s{sT}")
        for r in (1, 2):
            e(f"s_xor_b32 s{sT}, s{sWG}, {REL[r]}\nv_writelane_b32 v{XA}, s{sT}, {r}")
        e(f"v_lshlrev_b32 v{XA}, 10, v{XA}")
        if self.opt["two"]:
            e(f"s_lshl_b32 s{sT}, s{sT}, 10\ns_add_u32 s{sT}, s{sT}, 64\nv_writelane_b32 v{XA}, s{sT}, 2")

    def g2_bases(self):
        e = self
        self.srd("w2")
        e(f"s_and_b32 s{sM}, s{sNJ}, 1\ns_lshl_b32 s{sT}, s{sKH}, 1\ns_add_u32 s{sM}, s{sM}, s{sT}")
        e(f"s_mul_i32 s{sA}, s{sMI2}, {112*8192}\ns_mul_i32 s{sT}, s{sM}, {14*16384}\ns_add_u32 s{sA}, s{sA}, s{sT}")
        e(f"s_lshl_b32 s{sG}, s{sW4}, 12\ns_add_u32 s{sA}, s{sA}, s{sG}")
        e(f"s_mul_i32 s{sB}, s{sM}, {896*2048}\ns_lshr_b32 s{sMO}, s{sNJ}, 1\ns_lshl_b32 s{sT}, s{sMO}, 9\ns_add_u32 s{sB}, s{sB}, s{sT}")
        e(f"s_lshl_b32 s{sT}, s{sW4}, 15\ns_add_u32 s{sB}, s{sB}, s{sT}")
        e(f"s_lshl_b32 s{sPH}, s{sW4}, 13\ns_add_u32 s{sPH}, s{sPH}, 16384")
        r = self.opt["rot2"]
        e(f"s_andn2_b32 s{sC}, s{sMI2}, 3")
        if r == 1:
            e(f"s_and_b32 s{sT}, s{sNJ}, 1\ns_lshl_b32 s{sT}, s{sT}, 1\ns_add_u32 s{sC}, s{sC}, s{sT}")
            e(f"s_cmp_eq_u32 s{sC}, 14\ns_cselect_b32 s{sC}, 0, s{sC}")
        if r:
            e(f"s_add_u32 s{sMO}, s{sMO}, s{sMI2}")
        else:
            e(f"s_mov_b32 s{sMO}, 0")

    def kof(self):
        return (f"s_cmp_ge_u32 s{sC}, 12\ns_cselect_b32 s{sL}, 1, 3\ns_add_u32 s{sT}, s{sC}, s{sMO}\ns_and_b32 s{sT}, s{sT}, s{sL}\n"
                f"s_andn2_b32 s{sL}, s{sC}, 3\ns_add_u32 s{sL}, s{sL}, s{sT}\n"
                f"s_add_u32 s{sC}, s{sC}, 1\ns_cmp_eq_u32 s{sC}, 14\ns_cselect_b32 s{sC}, 0, s{sC}")

    def w_tile(self, vW, slot, sO):
        e = self
        for j in range(8):
            if j % 4 == 0:
                e(f"s_add_u32 m0, s{sPH}, {slot*G1_SLOT + j*1024}\ns_nop 0")
            e(f"buffer_load_dwordx4 v{vW+j}, {self.R('w2')}, s{sO} offen offset:{(j%4)*1024} lds")

    def g2_first(self, before):
        e = self
        wl, pos = self.opt["wl"], self.opt["w1pos"]
        n = 0
        if before:
            self.w2_voff(16, 24)
            self.g2_bases()
            for st in range(2):
                e(self.kof())
                e(self.off_h().replace(f"s{sE}", f"s{(sD, sH)[st]}"))
                e(self.off_w().replace(f"s{sF}", f"s{(sE, sF)[st]}"))
            if not wl:
                self.w_tile(16, 0, sE)
                n += 8
        if before == (pos == 0):
            lp, ok = self.lab("lds"), self.lab("ldsok")
            e(f"s_cmp_ge_u32 s{sI}, 28\ns_cbranch_scc1 {ok}\nv_mov_b32 v24, {LDS_VERD+4}\ns_mov_b32 s{sN}, 0")
            e(f"{lp}:\nds_read_b32 v25, v24\ns_add_u32 s{sN}, s{sN}, 1\ns_waitcnt lgkmcnt(0)\nv_readfirstlane_b32 s{sM}, v25")
            e(f"s_cmp_ge_u32 s{sN}, {SPIN_MAX}\ns_cbranch_scc1 {ok}\ns_cmp_lt_u32 s{sM}, 256\ns_cbranch_scc1 {lp}\n{ok}:")
            self.w_tile(16, 1, sF)
            n += 8
        return n

    def g2_lwave(self):
        e = self
        vW = 212
        self.g2_bases()
        wl = self.opt["wl"]
        e(self.kof())
        if wl:
            e(self.off_w())
            self.w_tile(vW, 0, sF)
        e(self.kof())
        e(f"s_setprio 0\ns_waitcnt vmcnt({8*wl}) lgkmcnt(0)")
        self.stamp(5)
        groups, tail = self.conv_pre()
        assert not groups
        for x in [x for x in tail if "store" not in x] + [x for x in tail if "store" in x]:
            e(x)
        e(f"s_setprio {self.opt['prio']}")
        self.stamp(9)
        ops = [0] * (8 * wl) + [None] * 4

        def bar(*need):
            n = min(ops[::-1].index(x) for x in need if x in ops) if any(x in ops for x in need) else 63
            e(f"s_waitcnt vmcnt({min(n, 63)})\ns_barrier")

        def flag_loads():
            e(f"buffer_load_dword v5, v203, {self.R('ws')}, s{sH} offen sc1")
            e(f"buffer_load_dwordx2 v[6:7], v202, {self.R('ws')}, s{sJ} offen sc1")
        for k in range(12):
            st = k + 2
            e(f"s_add_u32 m0, s{sG}, {(st % 3) * G1_SLOT}")
            bar(k)
            if k == 0:
                self.stamp(8)
            for x in self.dma_h():
                e(x)
            e(self.off_w())
            self.w_tile(vW, st % 3, sF)
            ops.extend([st] * 12)
            e(self.kof())
            e(self.off_h())
            if k == 2:
                e(f"s_lshl_b32 s{sT}, s{sWG}, 8\ns_add_u32 s{sT}, s{sT}, s{sW4}\ns_lshl_b32 s{sT}, s{sT}, 2\ns_add_u32 s{sT}, s{sT}, {WS_FL+FL_Y:#x}")
                self.lane0_begin()
                e(f"buffer_store_dword v253, v252, {self.R('ws')}, s{sT} offen sc1")
                self.lane0_end()
                ops.append(None)
            if k == self.opt["fk"]:
                flag_loads()
                ops.extend(["f"] * 2)

        def yslow():
            e("L_g2l_yslow:")
            e(f"s_add_u32 s{sK}, s{sK}, 1\ns_cmp_ge_u32 s{sK}, {SPIN_MAX}\ns_cbranch_scc1 L_g2l_yok")
            e(f"s_sleep {self.opt['sleep']}")
            flag_loads()
            e("s_waitcnt vmcnt(0)\ns_branch L_g2l_ycheck")
        self.cold.append(yslow)
        e(f"s_lshl_b32 s{sF}, s{sD}, 17\ns_lshl_b32 s{sT}, s{sW4}, 15\ns_add_u32 s{sF}, s{sF}, s{sT}")
        e(f"s_lshl_b32 s{sT}, s{sNJ}, 8\ns_add_u32 s{sF}, s{sF}, s{sT}")
        e(f"s_add_u32 m0, s{sG}, {EP_Q}\ns_mov_b32 s{sK}, 0")
        bar(12, "f")
        for j in range(4):
            e(f"buffer_load_dwordx4 v{204+j}, {self.R('q')}, s{sF} offen offset:{j*1024} lds")
        e(f"s_lshl_b32 s{sE}, s{sD}, 7\ns_lshl_b32 s{sT}, s{sNJ}, 19\ns_add_u32 s{sE}, s{sE}, s{sT}")
        e(f"s_lshl_b32 s{sT}, s{sW4}, 17\ns_add_u32 s{sE}, s{sE}, s{sT}\ns_add_u32 s{sE}, s{sE}, {WS_YT:#x}")
        e(f"s_lshl_b32 s{sF}, s{sD}, 9\ns_add_u32 s{sF}, s{sF}, {WS_G:#x}")
        e("L_g2l_ycheck:")
        e("v_and_b32 v9, v5, v6\nv_and_b32 v9, v9, v7\nv_cmp_ne_u32 vcc, 1, v9\ns_nop 0")
        e("s_cmp_eq_u64 vcc, 0\ns_cbranch_scc0 L_g2l_yslow")
        e("L_g2l_yok:")
        e(f"s_add_u32 m0, s{sG}, {EP_Y}\ns_nop 0")
        for j in range(4):
            e(f"buffer_load_dwordx4 v{208+j}, {self.R('ws')}, s{sE} offen offset:{j*1024} sc1 lds")
        e(f"s_add_u32 m0, s{sG}, {EP_G4}\ns_nop 0")
        e(f"buffer_load_dwordx4 v1, {self.R('ws')}, s{sF} offen sc1 lds")
        ops.extend([None] * 9)
        bar(13)
        e("s_waitcnt vmcnt(0)")
        self.stamp(11)
        e("s_barrier")

    def g2_cwave(self):
        e = self
        ACC, XR, WS_, vH, vWA = 120, 16, (48, 80), 8, 10

        def rx(p):
            return [f"ds_read_b128 v[{XR+8*(p%4)+4*ks}:{XR+8*(p%4)+4*ks+3}], v{vH+1-(p>>2)} offset:{ks*8192+(p&3)*1024}" for ks in range(2)]

        def rw(q):
            return [f"ds_read_b64_tr_b16 v[{WS_[q]+8*t+4*ks+2*hh}:{WS_[q]+8*t+4*ks+2*hh+1}], v{vWA+t} offset:{ks*16384+hh*8192}"
                    for t in range(4) for ks in range(2) for hh in range(2)]

        def pairs(q, tiles, first=False):
            out = []
            for n, (t, p) in enumerate(tiles):
                r = ACC + 8 * ((t >> 1) * 8 + (p ^ 4)) + 4 * (t & 1)
                for i in range(2):
                    ks = i ^ (n & 1)
                    w, x = WS_[q] + 8 * t + 4 * ks, XR + 8 * (p % 4) + 4 * ks
                    out.append(f"v_mfma_f32_16x16x32_bf16 v[{r}:{r+3}], v[{w}:{w+3}], v[{x}:{x+3}], {0 if first and i == 0 else f'v[{r}:{r+3}]'}")
            return out
        rows = lambda ps: [(n if p % 2 == 0 else 3 - n, p) for p in ps for n in range(4)]
        slot = [f"s_add_u32 s{sA}, s{sA}, 1", f"s_cmp_eq_u32 s{sA}, 3", f"s_cselect_b32 s{sA}, 0, s{sA}",
                f"s_cselect_b32 s{sB}, {(-2*G1_SLOT) & 0xffffffff:#x}, s{sC}"]
        bump = [f"v_add_u32 v{r}, s{sB}, v{r}" for r in (vWA, vH, vH + 1, vWA + 1, vWA + 2, vWA + 3)]

        def head():
            it = [(-1, "s_waitcnt lgkmcnt(6)"), (5, "s_waitcnt lgkmcnt(4)")]
            for ph in range(5):
                it += [(8 * ph + i, x) for i, x in enumerate(rx(ph + 3))]
            return it + [(8 * ph - 1, "s_waitcnt lgkmcnt(4)") for ph in (2, 3, 4)]

        def step(q, first=False, extra=()):
            it = head() + [(10 + i, x) for i, x in enumerate(slot)] + [(34 + i // 2, x) for i, x in enumerate(bump)]
            it += [(39, "s_waitcnt lgkmcnt(4)"), (40, "s_waitcnt vmcnt(0) lgkmcnt(0)"), (40, "s_barrier")]
            w = rw(1 - q)
            seq = w[:2] + rx(0)[:1] + w[2:4] + rx(0)[1:] + w[4:8] + rx(1)[:1] + w[8:10] + rx(1)[1:] + w[10:]
            it += [(41 + i, x) for i, x in enumerate(seq + rx(2))]
            self.place(pairs(q, rows(range(8)), first), it + list(extra))
        self.stamp(8)
        self.g2_first(False)
        e(f"s_mov_b32 s{sN}, 0\nL_hpoll:")
        e(f"buffer_load_dword v24, v14, {self.R('ws')}, 0 offen sc1\ns_waitcnt vmcnt(0)")
        e(f"v_cmp_ne_u32 vcc, 1, v24\ns_add_u32 s{sN}, s{sN}, 1\ns_cmp_eq_u64 vcc, 0\ns_cbranch_scc1 L_hpolldone")
        e(f"s_sleep {self.opt['hsleep']}\ns_cmp_lt_u32 s{sN}, {SPIN_MAX}\ns_cbranch_scc1 L_hpoll\nL_hpolldone:")
        self.stamp(9)
        for st in range(2):
            e(f"s_add_u32 m0, s{sG}, {st*G1_SLOT}\ns_nop 0")
            for x in self.dma_h():
                e(x.replace(f"s{sE} ", f"s{(sD, sH)[st]} "))
        e(f"s_mov_b32 s{sK}, 0\ns_mov_b32 s{sA}, 0\ns_mov_b32 s{sC}, {G1_SLOT:#x}")
        self.srd("out")
        e(f"s_lshl_b32 s{sD}, s{sWG}, 16\ns_add_u32 s{sD}, s{sD}, s{sG}\ns_add_u32 s{sD}, s{sD}, {WS_PX4:#x}")
        e(f"s_add_u32 s{sE}, s{sD}, 0x4000\ns_add_u32 s{sF}, s{sD}, 0x8000")
        e(f"s_lshl_b32 s{sJ}, s{sW4}, 7\ns_add_u32 s{sJ}, s{sJ}, {WS_FL+FL_X:#x}\ns_lshl_b32 s{sG}, s{sWG}, 10\ns_add_u32 s{sG}, s{sG}, s{sJ}")
        e(f"s_lshl_b32 s{sH}, s{sMI2}, 1\ns_add_u32 s{sH}, s{sH}, s{sKH}\ns_lshl_b32 s{sH}, s{sH}, 17")
        e(f"s_lshl_b32 s{sT}, s{sNJ}, 8\ns_add_u32 s{sH}, s{sH}, s{sT}\ns_lshl_b32 s{sT}, s{sW4}, 6\ns_add_u32 s{sH}, s{sH}, s{sT}")
        e("s_waitcnt vmcnt(4)")
        self.stamp(11)
        e("s_barrier")
        self.stamp(12)
        w = rw(0)
        for x in w[:4] + rx(0) + w[4:] + rx(1) + rx(2):
            e(x)
        step(0, True)
        e(".p2align 6")
        e("L_g2c_loop:")
        step(1)
        step(0, extra=[(18, f"s_add_u32 s{sK}, s{sK}, 1"), (19, f"s_cmp_lt_u32 s{sK}, 6")])
        e("s_cbranch_scc1 L_g2c_loop")

        def send(rel, g, sl):
            n = (4, 12, 8)[rel] + g
            a = ACC + 8 * n
            return [(sl + c // 2, f"v_cvt_pk_bf16_f32 v{a+c}, v{a+2*c}, v{a+2*c+1}") for c in range(4)] + \
                   [(sl + 2, f"buffer_store_dwordx4 v[{a}:{a+3}], v1, {self.R('ws')}, s{sD+rel} offen offset:{g*1024} sc1")]
        half = lambda tq: [(2 * tq + (n ^ (p & 1)), p) for p in range(4, 8) for n in range(2)]
        it = head() + [(35, "s_waitcnt lgkmcnt(2)"), (43, "s_waitcnt lgkmcnt(0)")]
        for g in range(4):
            it += send(g & 1, g, 11 + 8 * g) + send(1 - (g & 1), g, 15 + 8 * g) + send(2, g, 44 + 4 * g)
        if self.opt["two"]:
            it += [(62, "s_waitcnt vmcnt(4)"), (62, "s_mov_b64 exec, 1"),
                   (62, f"buffer_store_dword v253, v252, {self.R('ws')}, s{sG} offen sc1"), (62, "s_mov_b64 exec, -1")]
        self.place(pairs(1, rows(range(4)) + half(1) + half(0)), it)
        self.stamp(13)
        e("s_barrier")
        QR, YR, GT, OL, T, PR = 16, 32, 48, 56, 60, 64
        for st in range(4):
            e(f"ds_read_b64 v[{GT+2*st}:{GT+1+2*st}], v{GL} offset:{128*st}")
        for st in range(4):
            for t in range(2):
                n = 2 * st + t
                e(f"ds_read_b64 v[{QR+2*n}:{QR+2*n+1}], v{QA+t} offset:{st*4096}")
                e(f"ds_read_b64_tr_b16 v[{YR+2*n}:{YR+2*n+1}], v{YA+st} offset:{t*2048}")
        for r in range(3):
            e(f"s_xor_b32 s{sD+r}, s{sD+r}, {REL[r] << 16:#x}")
        self.stamp(14)
        e("s_waitcnt vmcnt(0)")
        self.lane0_begin()
        e(f"buffer_store_dword v253, v252, {self.R('ws')}, s{sG} offen offset:{64 if self.opt['two'] else 0} sc1")
        self.lane0_end()
        self.stamp(15)
        e(f"buffer_load_dword v2, v{XA}, {self.R('ws')}, s{sJ} offen sc1")
        for n in range(8):
            g = GT + 2 * (n // 2)
            a = ACC + 4 * n
            if n % 2 == 0:
                e(f"s_waitcnt lgkmcnt({12-2*n})\nv_lshrrev_b32 v{OL+n//2}, 16, v{g+1}")
            for h in range(2):
                e(f"v_lshlrev_b32 v{T}, 16, v{QR+2*n+h}\nv_and_b32 v{T+1}, 0xffff0000, v{QR+2*n+h}")
                e(f"v_lshlrev_b32 v{T+2}, 16, v{YR+2*n+h}\nv_and_b32 v{T+3}, 0xffff0000, v{YR+2*n+h}")
                e(f"v_pk_mul_f32 v[{T}:{T+1}], v[{T}:{T+1}], v[{T+2}:{T+3}]")
                e(f"v_pk_mul_f32 v[{T}:{T+1}], v[{T}:{T+1}], v[{g}:{g+1}] op_sel_hi:[1,0]")
                e(f"v_pk_fma_f32 v[{a+2*h}:{a+2*h+1}], v[{a+2*h}:{a+2*h+1}], v[{g}:{g+1}], v[{T}:{T+1}] op_sel:[0,1,0] op_sel_hi:[1,1,1]")
        e(f"s_mov_b32 s{sN}, 0")
        e("L_xchk:")
        e(f"s_waitcnt vmcnt(0)\nv_cmp_ne_u32 vcc, 1, v2\ns_add_u32 s{sN}, s{sN}, 1")
        e(f"s_cmp_eq_u32 vcc_lo, 0\ns_cbranch_scc1 L_xok\ns_cmp_ge_u32 s{sN}, {SPIN_MAX}\ns_cbranch_scc1 L_xok")
        e(f"s_sleep {self.opt['xsleep']}\nbuffer_load_dword v2, v{XA}, {self.R('ws')}, s{sJ} offen sc1\ns_branch L_xchk")
        e("L_xok:")
        self.stamp(16)
        for st in range(4):
            for r in range(3):
                d = PR + 12 * st + 4 * r
                e(f"buffer_load_dwordx4 v[{d}:{d+3}], v1, {self.R('ws')}, s{sD+r} offen offset:{st*1024} sc1")
        for st in range(4):
            a = ACC + 8 * st
            for r in range(3):
                d = PR + 12 * st + 4 * r
                e(f"s_waitcnt vmcnt({11-3*st-r})")
                for c in range(4):
                    e(f"v_dot2c_f32_bf16 v{a+2*c}, v{d+c}, v{OL+st}\nv_dot2c_f32_bf16 v{a+2*c+1}, v{d+c}, v{GT+2*st+1}")
            e("s_nop 0")
            for c in range(4):
                e(f"v_cvt_pk_bf16_f32 v{QR+4*st+c}, v{a+2*c}, v{a+2*c+1}")
            for t in range(2):
                e(f"ds_write_b64 v{OA+t}, v[{QR+4*st+2*t}:{QR+4*st+2*t+1}] offset:{st*1024}")
            e(f"ds_read_b128 v[{YR+4*st}:{YR+4*st+3}], v{RA} offset:{st*1024}")
        self.stamp(17)
        for n in range(4):
            e(f"s_waitcnt lgkmcnt({3*(3-n)})")
            e(f"buffer_store_dwordx4 v[{YR+4*n}:{YR+4*n+3}], v{GA}, {self.R('out')}, s{sH} offen {self.opt.get('outsc', '')}")
            e(f"s_add_u32 s{sH}, s{sH}, 0x8000")
        self.stamp(18)


if __name__ == "__main__":
    G.main(Gen4)
```
